```python
import torch

def _softmax(x, axis=-1):
    return torch.softmax(x, dim=axis)
def _gelu(x):
    return torch.nn.functional.gelu(x, approximate="tanh")
def _silu(x):
    return torch.nn.functional.silu(x)
def _sigmoid(x):
    return torch.sigmoid(x)
def _layernorm(x, axis=-1, eps=1e-5):
    m = x.mean(dim=axis, keepdim=True)
    v = x.var(dim=axis, keepdim=True, unbiased=False)
    return (x - m) / torch.sqrt(v + eps)
def _scatter_add(tgt, idx, src, axis=0):
    return tgt.clone().index_add_(axis, idx, src)
def _segment_sum(src, seg, n):
    out = torch.zeros((n,) + src.shape[1:], dtype=src.dtype)
    return out.index_add_(0, seg, src)
def _pad(x, pw):
    flat = tuple(v for pair in reversed(pw) for v in pair)
    return torch.nn.functional.pad(x, flat)

kernel_name = 'gated_mix__sliding_block_cached__glu_gated_reglu__decode'

def setup_inputs():

    _w = (lambda a: (lambda t: t.to(torch.bfloat16) if t.is_floating_point() else t)(torch.as_tensor(a)))
    def _A_setup():
        B, Sq, D = 1, 1, 512
        Hq, Hkv, Sk, Dh = 32, 32, 8192, 128
        assert Hq % Hkv == 0, (Hq, Hkv)
        return {
            "x": _w((lambda *s: torch.randn(*s, dtype=torch.bfloat16) * 0.05)(B, Sq, D)),
            "k_cache": _w((lambda *s: torch.randn(*s, dtype=torch.bfloat16) * 6.4)(B, Hkv, Sk, Dh)),
            "v_cache": _w((lambda *s: torch.randn(*s, dtype=torch.bfloat16) * 0.05)(B, Hkv, Sk, Dh)),
            "wq": _w((lambda *s: torch.randn(*s, dtype=torch.bfloat16) * 6.4)(D, Hq * Dh) * (D ** -0.5)),
            "wo": _w((lambda *s: torch.randn(*s, dtype=torch.bfloat16) * 0.05)(Hq * Dh, D) * ((Hq * Dh) ** -0.5)),
        }
    _A_in = _A_setup()

    def _B_setup():
        B, S, D, F = 1, 1, 512, 1376
        return {
            "x": _w((lambda *s: torch.randn(*s, dtype=torch.bfloat16) * 0.05)(B, S, D)),
            "W_gate": _w((lambda *s: torch.randn(*s, dtype=torch.bfloat16) * 0.8)(D, F) * (2.0 / D) ** 0.5),
            "W_up": _w((lambda *s: torch.randn(*s, dtype=torch.bfloat16) * 0.8)(D, F) * (2.0 / D) ** 0.5),
            "W_down": _w((lambda *s: torch.randn(*s, dtype=torch.bfloat16) * 0.8)(F, D) * (1.0 / F) ** 0.5),
        }
    _B_in = _B_setup()

    return {
        "A_x": _A_in["x"],
        "A_k_cache": _A_in["k_cache"],
        "A_v_cache": _A_in["v_cache"],
        "A_wq": _A_in["wq"],
        "A_wo": _A_in["wo"],
        "B_x": _B_in["x"],
        "B_W_gate": _B_in["W_gate"],
        "B_W_up": _B_in["W_up"],
        "B_W_down": _B_in["W_down"],
        "gate_w": _w((lambda *s: torch.randn(*s, dtype=torch.bfloat16) * 0.1)(512) * 16.0),
    }

def reference(A_x, A_k_cache, A_v_cache, A_wq, A_wo, B_x, B_W_gate, B_W_up, B_W_down, gate_w):
    def _A_ref(x, k_cache, v_cache, wq, wo):
        B, Sq, D = x.shape
        Hq, Dh = 32, 128
        Hkv, Sk = k_cache.shape[1], k_cache.shape[2]
        W = min(4096, max(256, Sk // 4))
        rep = Hq // Hkv
        q = (lambda x, *d: x.permute(*d))((x @ wq).reshape(B, Sq, Hq, Dh), 0, 2, 1, 3)
        k = (lambda x, n, axis: torch.repeat_interleave(x, n, dim=axis))(k_cache[:, :, Sk - W:, :], rep, axis=1)
        v = (lambda x, n, axis: torch.repeat_interleave(x, n, dim=axis))(v_cache[:, :, Sk - W:, :], rep, axis=1)
        scores = torch.einsum("bhqd,bhkd->bhqk", q, k) * (Dh ** -0.5)
        p = _softmax(scores, axis=-1)
        o = torch.einsum("bhqk,bhkd->bhqd", p, v)
        return (lambda x, *d: x.permute(*d))(o, 0, 2, 1, 3).reshape(B, Sq, Hq * Dh) @ wo

    def _B_ref(x, W_gate, W_up, W_down):
        gate = torch.einsum("bsd,df->bsf", x, W_gate)
        up = torch.einsum("bsd,df->bsf", x, W_up)
        gate = gate * (lambda x, dt: x.to(dt))(gate > 0, gate.dtype)
        h = gate * up
        return torch.einsum("bsf,fd->bsd", h, W_down)

    x = A_x
    g = _sigmoid((x * gate_w).sum(-1, keepdims=True))
    a = _A_ref(x, A_k_cache, A_v_cache, A_wq, A_wo)
    b = _B_ref(x, B_W_gate, B_W_up, B_W_down)
    return g * a + (1 - g) * b
```

```python
import re
TRANS = ("v_exp_f32","v_log_f32","v_rcp_f32","v_rsq_f32","v_sqrt_f32","v_sin_f32","v_cos_f32")
def regs(op):
    op = op.strip()
    op = re.sub(r"^-|^abs\(|\)$|^\||\|$", "", op)
    m = re.fullmatch(r"([vsa])(\d+)", op)
    if m: return {(m.group(1), int(m.group(2)))}
    m = re.fullmatch(r"([vsa])\[(\d+):(\d+)\]", op)
    if m: return {(m.group(1), i) for i in range(int(m.group(2)), int(m.group(3))+1)}
    if op == "vcc": return {("s", 106), ("s", 107)}
    if op == "vcc_lo": return {("s", 106)}
    if op == "vcc_hi": return {("s", 107)}
    return set()
class Ins:
    def __init__(s, text):
        s.text = text
        t = text.split(";")[0].strip()
        s.label = t.endswith(":")
        s.dir = t.startswith(".") or t == ""
        s.op = t.split()[0] if t else ""
        rest = t[len(s.op):].strip()
        ops, depth, cur = [], 0, ""
        for ch in rest:
            if ch == "[": depth += 1
            if ch == "]": depth -= 1
            if ch == "," and depth == 0: ops.append(cur); cur = ""
            else: cur += ch
        if cur.strip(): ops.append(cur)
        ops = [o.strip().split()[0] if o.strip() else "" for o in ops]
        s.ops = ops
        op = s.op
        s.mfma = op.startswith("v_mfma")
        s.valu = op.startswith("v_") and not s.mfma
        s.dpp = "_dpp" in op
        s.dot = op.startswith("v_dot")
        s.trans = any(op.startswith(x) for x in TRANS)
        s.perml = op.startswith("v_permlane")
        s.rdl = op.startswith("v_readlane") or op.startswith("v_readfirstlane")
        s.vmem = op.startswith(("buffer_", "global_", "flat_"))
        s.ds = op.startswith("ds_")
        s.store = (s.vmem and ("store" in op or "atomic" in op))
        R = [regs(o) for o in ops]
        s.w, s.r = set(), set()
        if s.valu or s.mfma:
            s.w = set(R[0]) if R else set()
            for x in R[1:]: s.r |= x
            if s.perml: s.w |= R[1]; s.r |= R[0]
            if op.startswith(("v_fmac", "v_dot2c", "v_pk_fmac")): s.r |= R[0]
            if "_co_" in op: s.w |= R[1]
            if op.startswith("v_cndmask") and len(ops) == 3: s.r |= regs("vcc")
            if s.mfma: s.srcc = R[3]; s.srcab = R[1] | R[2]
        elif s.vmem:
            if s.store or " lds" in t:
                for x in R: s.r |= x
            else:
                s.w = set(R[0])
                for x in R[1:]: s.r |= x
            s.wide = s.store and ("x4" in op or "x3" in op)
            if s.store:
                s.data = R[0] if op.startswith("buffer_") else R[1]
        elif s.ds:
            if op.startswith(("ds_read", "ds_bpermute", "ds_permute", "ds_swizzle")) or "_rtn" in op:
                s.w = set(R[0])
                for x in R[1:]: s.r |= x
            else:
                for x in R: s.r |= x
        s.states = 1
        if op == "s_nop": s.states = int(ops[0], 0) + 1
        if s.label or s.dir: s.states = 0
def need(p, c):
    n = 0
    vw = {x for x in p.w if x[0] in "va"}
    sw = {x for x in p.w if x[0] == "s"}
    if p.valu:
        if c.dpp and vw & c.r: n = max(n, 2)
        if c.mfma and vw & c.r: n = max(n, 2)
        if c.perml and vw & c.r: n = max(n, 2)
        if c.rdl and vw & c.r: n = max(n, 1)
        if p.trans and (c.valu or c.mfma) and not c.trans and vw & c.r: n = max(n, 1)
        if p.trans and c.trans and vw & c.r: n = max(n, 1)
        if sw:
            if c.valu and sw & c.r: n = max(n, 4 if c.rdl or c.op.startswith("v_writelane") else 2)
            if c.vmem and sw & c.r: n = max(n, 5)
        if p.dot and vw & (c.r | c.w):
            same = c.op == p.op
            if same:
                R = [regs(o) for o in c.ops]
                if vw & (R[1] | R[2]): n = max(n, 3)
            else: n = max(n, 3)
    if p.mfma:
        big = "32x32" in p.op
        full = 12 if big else 8
        if c.mfma:
            if vw & c.srcab: n = max(n, full)
            if vw & c.srcc and (c.srcc != vw or c.op != p.op): n = max(n, full-2)
            elif vw & c.w and not (vw & c.srcc): n = max(n, full)
        elif (c.valu or c.vmem or c.ds) and vw & (c.r | c.w): n = max(n, full)
        if c.valu and p.srcc & c.w: n = max(n, 7 if big else 3)
    if p.vmem and p.store and p.wide:
        if p.data & c.w: n = max(n, 2)
    return n
def finalize(lines):
    out = []
    for ln in lines:
        for t in ln.split("\n"):
            c = Ins(t)
            if not (c.label or c.dir):
                dist, req = 0, 0
                for p in reversed(out):
                    if dist >= 12: break
                    if p.states:
                        req = max(req, need(p, c) - dist)
                        dist += p.states
                if req > 0: out.append(Ins(f"s_nop {req-1}"))
            out.append(c)
    return "\n".join(("" if (i.label or i.dir) else "    ") + i.text for i in out) + "\n"
```

```python
import sys, argparse
from asmlib import finalize
KN = "gated_mix__sliding_block_cached__glu_gated_reglu__decode_kernel"
HEADER = open("gated_mix__sliding_block_cached__glu_gated_reglu__decode.s.ref").read().split("; Override launch")[0]

H0BASE = 4096
H1BASE = H0BASE + 32*4*8*256
H1STR = 640
H2BASE = H1BASE + 256*H1STR
WSUSE = H2BASE + 256*512
L_Q = 0; L_G = 512; L_MX = 528; L_PART = 592; PSTR = 528; L_Y = L_PART + 4*PSTR
LDS_BYTES = L_Y + 8*256

def gen(o):
    L = []
    A = L.append
    ld = o.ld
    nst = [0]
    def stamp(k):
        if o.stamps: A(f"s_memrealtime s[{64+2*k}:{65+2*k}]")
    def dump(base, n, lbl):
        if not o.stamps: return
        A("s_waitcnt lgkmcnt(0)")
        A("s_mov_b64 exec, 1")
        A("s_lshl_b32 s60, s2, 8"); A("s_add_u32 s62, s28, s60"); A("s_addc_u32 s63, s29, 0")
        A("s_add_u32 s62, s62, 0x8000000"); A("s_addc_u32 s63, s63, 0")
        A("v_mov_b32 v3, 0")
        for k in range(n):
            A(f"v_mov_b32 v4, s{64+2*k}"); A(f"v_mov_b32 v5, s{65+2*k}")
            A(f"global_store_dwordx2 v3, v[4:5], s[62:63] offset:{8*(base+k)}")
            A("s_nop 1")
    def tagq(r):
        for i in range(4): A(f"v_bfi_b32 v{r+i}, v8, s{40+i}, v{r+i}")
    def chk(r, t):
        A(f"v_perm_b32 v{t}, v{r+1}, v{r}, s44")
        A(f"v_perm_b32 v{t+1}, v{r+3}, v{r+2}, s45")
        A(f"v_or_b32 v{t}, v{t}, v{t+1}")
    DP = "row_mask:0xf bank_mask:0xf"
    def red8(op, rs):
        for pat in ("quad_perm:[1,0,3,2]", "quad_perm:[2,3,0,1]", "row_half_mirror"):
            for r in rs: A(f"{op}_dpp v{r}, v{r}, v{r} {pat} {DP}")

    stamp(0)
    A("s_cmp_ge_u32 s2, 256"); A("s_cbranch_scc1 L_end")
    A("s_load_dwordx16 s[4:19], s[0:1], 0")
    A("s_load_dwordx8 s[20:27], s[0:1], 64")
    A("s_load_dwordx2 s[28:29], s[0:1], 96")
    A("v_lshrrev_b32 v1, 6, v0")
    A("v_and_b32 v0, 63, v0")
    A("v_readfirstlane_b32 s3, v1")
    if o.map == "sx":
        A("s_and_b32 s30, s2, 7"); A("s_lshr_b32 s31, s2, 3")
    else:
        A("s_lshr_b32 s30, s2, 5"); A("s_and_b32 s31, s2, 7"); A("s_lshl_b32 s31, s31, 2")
        A("s_bfe_u32 s32, s2, 0x20003"); A("s_add_u32 s31, s31, s32")
    A("v_and_b32 v1, 1, v0"); A("v_lshlrev_b32 v1, 4, v1"); A("v_mov_b32 v2, 0xffff"); A("v_lshlrev_b32 v1, v1, v2")
    A("v_bfe_u32 v2, v0, 1, 2")
    for d in range(4):
        A(f"v_cmp_eq_u32 vcc, {d}, v2"); A(f"v_cndmask_b32 v{4+d}, 0, v1, vcc")
    A("v_mov_b32 v8, 0xff"); A("v_lshrrev_b32 v9, 3, v0"); A("v_and_b32 v10, 7, v0")
    A("s_mov_b32 s35, 0x20000"); A("s_mov_b32 s39, 0x20000"); A("s_mov_b32 s51, 0x20000")
    A("s_mov_b32 s44, 0x0c0c0400"); A("s_mov_b32 s45, 0x04000c0c")
    A("s_cmp_ge_u32 s3, 4"); A("s_cbranch_scc1 L_kv")

    A("s_min_u32 s46, s31, 12"); A("s_mul_i32 s47, s31, 5"); A("s_add_u32 s46, s46, s47")
    A("s_cmp_lt_u32 s31, 12"); A("s_cselect_b32 s47, 6, 5")
    A("s_lshl_b32 s52, s31, 8"); A("s_lshl_b32 s53, s3, 7"); A("s_add_u32 s52, s52, s53")
    A("s_lshl_b32 s53, s46, 4")
    A("s_cmp_lt_u32 s3, 2")
    A("s_cselect_b32 s52, s52, s53"); A("s_movk_i32 s53, 2752"); A("s_cselect_b32 s53, 0x2000, s53")
    A("s_cselect_b32 s54, 8, s47")
    A("s_mov_b32 s34, 1409024"); A("s_cselect_b32 s34, 0x400000, s34")
    A("s_lshl_b32 s55, s30, 3")
    A("v_add_u32 v1, s55, v9"); A("v_lshlrev_b32 v2, 4, v1")
    A("v_lshlrev_b32 v1, 3, v1"); A("v_mul_lo_u32 v1, v1, s53")
    A("v_lshl_add_u32 v1, v10, 4, v1"); A("v_add_u32 v1, s52, v1")
    A("v_mov_b32 v3, 0x40000000"); A("v_cmp_gt_u32 vcc, s54, v10"); A("v_cndmask_b32 v1, v3, v1, vcc")
    A("s_waitcnt lgkmcnt(0)")
    stamp(1)
    A("global_load_dwordx4 v[12:15], v2, s[4:5]")
    A("s_cmp_eq_u32 s3, 2"); A("s_cselect_b64 s[32:33], s[16:17], s[18:19]")
    A("s_cmp_lt_u32 s3, 2"); A("s_cselect_b64 s[32:33], s[10:11], s[32:33]")
    A("s_and_b32 s33, s33, 0xffff")
    A("s_mov_b32 s55, 0")
    for i in range(8):
        A(f"buffer_load_dwordx4 v[{16+4*i}:{19+4*i}], v1, s[32:35], s55 offen {ld}")
        if i < 7: A("s_add_u32 s55, s55, s53")
    A("s_load_dword s40, s[28:29], 0")
    A("s_mov_b32 s48, s28"); A("s_and_b32 s49, s29, 0xffff"); A(f"s_mov_b32 s50, {WSUSE}")
    A("s_cmp_lg_u32 s3, 3"); A("s_cbranch_scc1 L_f_nog1")
    A("v_lshlrev_b32 v2, 4, v0")
    A("global_load_dwordx4 v[84:87], v2, s[4:5]")
    A("global_load_dwordx4 v[88:91], v2, s[22:23]")
    A("s_waitcnt vmcnt(10)"); A("s_branch L_f_g1")
    A("L_f_nog1:")
    A("s_waitcnt vmcnt(8)")
    A("L_f_g1:")
    A("s_mov_b32 s56, 0x01000100"); A("s_mov_b32 s57, 0x03020302")
    for i in range(8):
        A(f"v_perm_b32 v11, v{12+i//2}, v{12+i//2}, s{56+i%2}")
        for d in range(4): A(f"v_and_b32 v{48+4*i+d}, v11, v{4+d}")
    A("s_lshl_b32 s56, s31, 2"); A("s_add_u32 s56, s56, s3"); A("s_lshl_b32 s56, s56, 11"); A(f"s_add_u32 s56, s56, {H0BASE}")
    A("s_lshl_b32 s57, s30, 8"); A("s_add_u32 s57, s57, s56")
    A("v_lshrrev_b32 v1, 4, v0"); A("v_lshl_add_u32 v1, v10, 1, v1"); A("v_lshlrev_b32 v1, 4, v1")
    A("v_lshlrev_b32 v2, 8, v10"); A("v_lshl_add_u32 v2, v9, 4, v2")
    A("s_waitcnt lgkmcnt(0)")
    A("s_add_u32 s40, s40, 0x01010101"); A("s_lshr_b32 s41, s40, 8"); A("s_lshr_b32 s42, s40, 16"); A("s_lshr_b32 s43, s40, 24")
    A("s_waitcnt vmcnt(0)")
    stamp(2)
    for i in range(8):
        A(f"v_mfma_f32_16x16x32_bf16 v[80:83], v[{48+4*i}:{51+4*i}], v[{16+4*i}:{19+4*i}], " + ("0" if i == 0 else "v[80:83]"))
    for i in range(4): A(f"v_permlane32_swap_b32 v{80+i}, v{12+i}")
    for i in range(4): A(f"v_add_f32_dpp v{80+i}, v{12+i}, v{80+i} row_ror:8 {DP}")
    tagq(80)
    A("s_mov_b64 exec, 0x00ff00ff")
    A("buffer_store_dwordx4 v[80:83], v1, s[48:51], s57 offen sc1")
    A("s_mov_b64 exec, -1")
    stamp(3)
    A("s_cmp_lg_u32 s3, 3"); A("s_cbranch_scc1 L_f_nog2")
    for i in range(4):
        A(f"v_lshlrev_b32 v16, 16, v{84+i}"); A(f"v_and_b32 v17, 0xffff0000, v{84+i}")
        A(f"v_lshlrev_b32 v18, 16, v{88+i}"); A(f"v_and_b32 v19, 0xffff0000, v{88+i}")
        A("v_mul_f32 v16, v16, v18"); A("v_mul_f32 v17, v17, v19")
        A("v_cvt_pk_bf16_f32 v16, v16, v17")
        A("v_lshlrev_b32 v17, 16, v16"); A("v_and_b32 v16, 0xffff0000, v16")
        if i == 0: A("v_add_f32 v20, v16, v17")
        else: A("v_add_f32 v20, v20, v16"); A("v_add_f32 v20, v20, v17")
    red8("v_add_f32", [20])
    A(f"v_add_f32_dpp v20, v20, v20 row_ror:8 {DP}")
    A("v_add_f32_dpp v20, v20, v20 row_bcast:15 row_mask:0xa bank_mask:0xf")
    A("v_add_f32_dpp v20, v20, v20 row_bcast:31 row_mask:0xc bank_mask:0xf")
    A("v_cvt_pk_bf16_f32 v20, v20, v20"); A("v_and_b32 v20, 0xffff0000, v20")
    A("v_mul_f32 v20, 0xbfb8aa3b, v20"); A("v_exp_f32 v20, v20"); A("v_add_f32 v20, 1.0, v20"); A("v_rcp_f32 v20, v20")
    A("v_cvt_pk_bf16_f32 v20, v20, v20"); A("v_and_b32 v20, 0xffff0000, v20")
    A("v_sub_f32 v21, 1.0, v20"); A("v_cvt_pk_bf16_f32 v21, v21, v21"); A("v_and_b32 v21, 0xffff0000, v21")
    A(f"v_mov_b32 v22, {L_G}")
    A("s_bfm_b64 exec, 1, 63")
    A("ds_write_b64 v22, v[20:21]")
    A("s_mov_b64 exec, -1")
    A("L_f_nog2:")
    if o.wait_pub: A("s_waitcnt vmcnt(0)")
    stamp(4)
    A(f"s_mov_b32 s58, {o.spin}")
    A("L_p0:")
    A("buffer_load_dwordx4 v[16:19], v2, s[48:51], s56 offen sc1")
    A("buffer_load_dwordx4 v[20:23], v2, s[48:51], s56 offen offset:128 sc1")
    A("s_sub_u32 s58, s58, 1"); A("s_cbranch_scc1 L_end")
    A("s_waitcnt vmcnt(0)")
    chk(16, 24); chk(20, 26)
    A("v_cmp_eq_u32 vcc, s40, v24"); A("v_cmp_eq_u32 s[60:61], s40, v26"); A("s_and_b64 vcc, vcc, s[60:61]")
    A("s_cmp_eq_u64 vcc, exec"); A("s_cbranch_scc0 L_p0")
    stamp(5)
    for r in range(16, 24): A(f"v_and_b32 v{r}, 0xffffff00, v{r}")
    red8("v_add_f32", list(range(16, 24)))
    A("v_cvt_pk_bf16_f32 v16, v16, v17"); A("v_cvt_pk_bf16_f32 v17, v18, v19")
    A("v_cvt_pk_bf16_f32 v18, v20, v21"); A("v_cvt_pk_bf16_f32 v19, v22, v23")
    A("s_lshl_b32 s55, s3, 7"); A("v_lshl_add_u32 v1, v9, 3, s55")
    A("ds_write_b64 v1, v[16:17]"); A("ds_write_b64 v1, v[18:19] offset:64")
    A("s_mov_b32 s32, s12"); A("s_and_b32 s33, s13, 0xffff"); A("s_mov_b32 s34, 0x400000")
    A("s_mov_b32 s36, s20"); A("s_and_b32 s37, s21, 0xffff"); A("s_mov_b32 s38, 1409024")
    A("s_lshl_b32 s55, s31, 17"); A("s_lshl_b32 s56, s3, 15"); A("s_add_u32 s55, s55, s56"); A("s_lshl_b32 s56, s30, 7"); A("s_add_u32 s55, s55, s56")
    A("v_lshlrev_b32 v2, 4, v10"); A("v_lshl_add_u32 v1, v9, 12, v2")
    A("v_lshl_add_u32 v2, v9, 10, v2")
    A("s_add_u32 s57, s46, s3"); A("s_lshl_b32 s57, s57, 13"); A("s_add_u32 s56, s56, s57")
    A("s_add_u32 s57, s3, 4"); A("s_cmp_lt_u32 s57, s47"); A("s_mov_b32 s57, 0x40000000"); A("s_cselect_b32 s57, 0x8000, s57"); A("v_add_u32 v11, s57, v2")
    A("s_waitcnt lgkmcnt(0)")
    A("s_barrier")
    stamp(6)
    A("s_lshl_b32 s59, s3, 4"); A("v_lshl_add_u32 v3, v9, 1, s59")
    A("ds_read_u16 v40, v3 offset:256"); A("ds_read_u16 v41, v3 offset:384")
    A("ds_read_u16 v42, v3 offset:320"); A("ds_read_u16 v43, v3 offset:448")
    A(f"v_mov_b32 v3, {L_G}"); A("ds_read_b64 v[44:45], v3")
    A("s_barrier")
    A(f"buffer_load_dwordx4 v[16:19], v2, s[36:39], s56 offen {ld}")
    A(f"buffer_load_dwordx4 v[20:23], v11, s[36:39], s56 offen {ld}")
    for i in range(4): A(f"buffer_load_dwordx4 v[{24+4*i}:{27+4*i}], v1, s[32:35], s55 offen offset:{1024*i} {ld}")
    stamp(7)
    A("s_waitcnt lgkmcnt(0)")
    for t in range(2):
        A(f"v_lshlrev_b32 v{40+2*t}, 16, v{40+2*t}"); A(f"v_lshlrev_b32 v{41+2*t}, 16, v{41+2*t}")
        A(f"v_max_f32 v{40+2*t}, 0, v{40+2*t}"); A(f"v_mul_f32 v{40+2*t}, v{40+2*t}, v{41+2*t}")
        A(f"v_cvt_pk_bf16_f32 v{40+2*t}, v{40+2*t}, v{40+2*t}")
        for d in range(4): A(f"v_and_b32 v{48+4*t+d}, v{40+2*t}, v{4+d}")
    A(f"s_mul_i32 s56, s31, {8*H1STR}"); A(f"s_add_u32 s56, s56, {H1BASE}"); A("s_lshl_b32 s57, s3, 7"); A("s_add_u32 s57, s57, s56")
    A(f"v_mul_u32_u24 v2, {H1STR}, v10"); A("v_lshl_add_u32 v1, v9, 4, v2")
    A("v_bfe_u32 v3, v0, 4, 1"); A("v_lshl_add_u32 v3, v10, 1, v3"); A("v_lshlrev_b32 v3, 4, v3")
    A("v_lshrrev_b32 v11, 5, v0"); A("v_lshl_add_u32 v3, v11, 8, v3"); A("s_lshl_b32 s59, s3, 9"); A("v_add_u32 v3, s59, v3")
    A("s_barrier")
    stamp(8)
    A("s_waitcnt vmcnt(4)")
    A("v_mfma_f32_16x16x32_bf16 v[80:83], v[48:51], v[16:19], 0")
    A("v_mfma_f32_16x16x32_bf16 v[80:83], v[52:55], v[20:23], v[80:83]")
    for i in range(4): A(f"v_mul_f32 v{80+i}, v45, v{80+i}")
    A(f"s_mov_b32 s58, {o.spin}")
    A("L_p1:")
    A("buffer_load_dwordx4 v[16:19], v1, s[48:51], s57 offen sc1")
    A("buffer_load_dwordx4 v[20:23], v2, s[48:51], s56 offen offset:512 sc1")
    A("s_sub_u32 s58, s58, 1"); A("s_cbranch_scc1 L_end")
    A("s_waitcnt vmcnt(0)")
    chk(16, 40); chk(20, 42)
    A("v_cmp_eq_u32 vcc, s40, v40"); A("v_cmp_eq_u32 s[60:61], s40, v42"); A("s_and_b64 vcc, vcc, s[60:61]")
    A("s_cmp_eq_u64 vcc, exec"); A("s_cbranch_scc0 L_p1")
    stamp(9)
    A("v_and_b32 v21, 0xffff0000, v21")
    A("v_and_b32 v20, 0xffffff00, v20"); A("v_and_b32 v16, 0xffffff00, v16")
    A(f"v_max_f32_dpp v22, v21, v21 quad_perm:[1,0,3,2] {DP}")
    A("v_and_b32 v17, 0xffffff00, v17"); A("v_and_b32 v18, 0xffffff00, v18")
    A(f"v_max_f32_dpp v22, v22, v22 quad_perm:[2,3,0,1] {DP}")
    A("v_and_b32 v19, 0xffffff00, v19")
    A(f"v_max_f32_dpp v22, v22, v22 row_half_mirror {DP}")
    A("v_sub_f32 v21, v21, v22"); A("v_mul_f32 v21, 0x3fb8aa3b, v21"); A("v_exp_f32 v21, v21")
    for r in (20, 16, 17, 18, 19): A(f"v_mul_f32 v{r}, v21, v{r}")
    red8("v_add_f32", [20, 16, 17, 18, 19])
    A("v_rcp_f32 v20, v20"); A("v_mul_f32 v20, v44, v20")
    for i in range(4): A(f"v_mul_f32 v{16+i}, v20, v{16+i}")
    for i in range(4): A(f"v_cvt_pk_bf16_f32 v{16+i}, v{16+i}, v{16+i}")
    for i in range(4):
        for d in range(4): A(f"v_and_b32 v{48+4*i+d}, v{16+i}, v{4+d}")
        if i: A(f"v_mfma_f32_16x16x32_bf16 v[80:83], v[{44+4*i}:{47+4*i}], v[{20+4*i}:{23+4*i}], v[80:83]")
    A("v_mfma_f32_16x16x32_bf16 v[80:83], v[60:63], v[36:39], v[80:83]")
    A("s_mov_b32 exec_lo, 0x00ff00ff"); A("s_mov_b32 exec_hi, 0xff00ff00")
    A(f"ds_write_b128 v3, v[80:83] offset:{L_Y}")
    A("s_mov_b64 exec, -1")
    A("s_waitcnt lgkmcnt(0)")
    A("s_barrier")
    A("s_cmp_lg_u32 s3, 0"); A("s_cbranch_scc1 L_end")
    A("s_mov_b32 exec_hi, 0")
    A("v_lshlrev_b32 v1, 3, v0")
    for k in range(8): A(f"ds_read_b64 v[{16+2*k}:{17+2*k}], v1 offset:{L_Y+256*k}")
    A("s_lshl_b32 s56, s30, 14"); A(f"s_add_u32 s56, s56, {H2BASE}")
    if o.h2 == "out":
        A("s_lshl_b32 s57, s31, 9"); A("s_add_u32 s57, s57, s56"); A("v_lshlrev_b32 v1, 4, v0")
        A("s_lshl_b32 s55, s31, 4"); A("s_add_u32 s56, s56, s55"); A("v_lshlrev_b32 v2, 9, v0")
    else:
        A("s_lshl_b32 s57, s31, 4"); A("s_add_u32 s57, s57, s56"); A("v_lshlrev_b32 v1, 9, v0")
        A("s_lshl_b32 s55, s31, 9"); A("s_add_u32 s56, s56, s55"); A("v_lshlrev_b32 v2, 4, v0")
    A("s_not_b32 s41, s40")
    A("v_mov_b32 v34, s40"); A("v_mov_b32 v35, s41")
    A("s_waitcnt lgkmcnt(0)")
    for k in range(4): A(f"v_pk_add_f32 v[{16+4*k}:{17+4*k}], v[{16+4*k}:{17+4*k}], v[{18+4*k}:{19+4*k}]")
    A("v_pk_add_f32 v[16:17], v[16:17], v[20:21]"); A("v_pk_add_f32 v[24:25], v[24:25], v[28:29]")
    A("v_pk_add_f32 v[32:33], v[16:17], v[24:25]")
    A(f"buffer_store_dwordx4 v[32:35], v1, s[48:51], s57 offen {o.st2}")
    stamp(10)
    A(f"s_mov_b32 s58, {o.spin}")
    A("L_p2:")
    A("buffer_load_dwordx4 v[16:19], v2, s[48:51], s56 offen sc1")
    A("s_sub_u32 s58, s58, 1"); A("s_cbranch_scc1 L_end")
    A("s_waitcnt vmcnt(0)")
    A("v_cmp_eq_u64 vcc, s[40:41], v[18:19]")
    A("s_cmp_eq_u64 vcc, exec"); A("s_cbranch_scc0 L_p2")
    stamp(11)
    red8("v_add_f32", [16, 17])
    for r in (16, 17): A(f"v_add_f32_dpp v{r}, v{r}, v{r} row_ror:8 {DP}")
    for r in (16, 17): A(f"v_add_f32_dpp v{r}, v{r}, v{r} row_bcast:15 row_mask:0xa bank_mask:0xf")
    A("v_cvt_pk_bf16_f32 v16, v16, v17")
    A("s_lshl_b32 s55, s30, 7"); A("s_lshl_b32 s56, s31, 2"); A("s_add_u32 s55, s55, s56")
    A("v_mov_b32 v1, s55")
    A("s_mov_b32 exec_lo, 0x80000000")
    A("global_store_dword v1, v16, s[24:25]")
    A("s_cmp_lg_u32 s2, 0"); A("s_cbranch_scc1 L_f_fin")
    A("v_mov_b32 v1, 0")
    A("global_store_dword v1, v34, s[28:29]")
    A("L_f_fin:")
    stamp(12)
    dump(0, 13, "f")
    A("s_endpgm")

    A("L_kv:")
    A("s_sub_u32 s3, s3, 4")
    if o.pat in ("p0", "p1"):
        A("s_lshl_b32 s52, s30, 16"); A("s_lshl_b32 s53, s3, 14"); A("s_add_u32 s52, s52, s53"); stride = 1024
    elif o.pat in ("p2", "p2r"):
        A("s_lshl_b32 s52, s30, 16"); A("s_lshl_b32 s53, s3, 10"); A("s_add_u32 s52, s52, s53"); stride = 4096
    else:
        A("s_lshl_b32 s52, s30, 12"); A("s_lshl_b32 s53, s3, 10"); A("s_add_u32 s52, s52, s53"); stride = 32768
    A("s_lshl_b32 s53, s31, 21"); A("s_add_u32 s52, s52, s53"); A("s_add_u32 s52, s52, 0x180000")
    A("v_lshl_add_u32 v1, v0, 4, s52")
    if o.pat in ("p1", "p2r", "p3r"):
        A("s_and_b32 s54, s31, 15"); A(f"s_mul_i32 s54, s54, {stride}")
    else:
        A("s_mov_b32 s54, 0")
    A("s_mov_b32 s34, 0x4000000"); A("s_mov_b32 s38, 0x4000000")
    A("s_waitcnt lgkmcnt(0)")
    A("s_mov_b32 s32, s6"); A("s_and_b32 s33, s7, 0xffff"); A("s_mov_b32 s36, s8"); A("s_and_b32 s37, s9, 0xffff")
    for m in range(2):
        for i in range(16):
            r = 32 + 64*m + 4*i
            A(f"buffer_load_dwordx4 v[{r}:{r+3}], v1, s[{32+4*m}:{35+4*m}], s54 offen {ld}")
            A(f"s_add_u32 s54, s54, {stride}"); A(f"s_and_b32 s54, s54, {16*stride-1}")
        if m == 0: stamp(1)
    A("s_load_dword s40, s[28:29], 0")
    A("s_mov_b32 s48, s28"); A("s_and_b32 s49, s29, 0xffff"); A(f"s_mov_b32 s50, {WSUSE}")
    A("v_and_b32 v2, 15, v0"); A("v_lshlrev_b32 v3, 4, v2")
    stamp(2)
    A("s_barrier")
    A("ds_read_b128 v[12:15], v3")
    A("v_lshrrev_b32 v9, 4, v0")
    A("s_lshl_b32 s55, s3, 4"); A("v_lshl_add_u32 v11, v9, 2, s55")
    A("s_waitcnt vmcnt(16) lgkmcnt(0)")
    stamp(3)
    for d in range(4):
        for i in range(16):
            A(f"v_dot2_f32_bf16 v{16+i}, v{32+4*i+d}, v{12+d}, " + ("0" if d == 0 else f"v{16+i}"))
    for k in range(8): A(f"v_add_f32_dpp v{16+k}, v{16+k}, v{16+k} row_ror:8 row_mask:0xf bank_mask:0x3")
    for k in range(8): A(f"v_add_f32_dpp v{16+k}, v{24+k}, v{24+k} row_ror:8 row_mask:0xf bank_mask:0xc")
    for k in range(4): A(f"v_add_f32_dpp v{16+k}, v{16+k}, v{16+k} row_half_mirror row_mask:0xf bank_mask:0x5")
    for k in range(4): A(f"v_add_f32_dpp v{16+k}, v{20+k}, v{20+k} row_half_mirror row_mask:0xf bank_mask:0xa")
    for pat in ("quad_perm:[1,0,3,2]", "quad_perm:[2,3,0,1]"):
        for k in range(4): A(f"v_add_f32_dpp v{16+k}, v{16+k}, v{16+k} {pat} {DP}")
    for k in range(4): A(f"v_cvt_pk_bf16_f32 v{16+k}, v{16+k}, v{16+k}")
    for k in range(4): A(f"v_and_b32 v{16+k}, 0xffff0000, v{16+k}")
    for k in range(4): A(f"v_mul_f32 v{16+k}, 0x3db504f3, v{16+k}")
    for k in range(4): A(f"v_cvt_pk_bf16_f32 v{16+k}, v{16+k}, v{16+k}")
    for k in range(4): A(f"v_and_b32 v{16+k}, 0xffff0000, v{16+k}")
    A("v_max3_f32 v20, v16, v17, v18"); A("v_max_f32 v20, v20, v19")
    A(f"v_max_f32_dpp v20, v20, v20 row_ror:4 {DP}"); A(f"v_max_f32_dpp v20, v20, v20 row_ror:8 {DP}")
    A(f"ds_write_b32 v11, v20 offset:{L_MX}")
    A(f"v_mov_b32 v11, {L_MX}")
    A("s_add_u32 s40, s40, 0x01010101"); A("s_lshr_b32 s41, s40, 8"); A("s_lshr_b32 s42, s40, 16"); A("s_lshr_b32 s43, s40, 24")
    A("s_waitcnt lgkmcnt(0)")
    A("s_barrier")
    for k in range(4): A(f"ds_read_b128 v[{32+4*k}:{35+4*k}], v11 offset:{16*k}")
    A(f"s_mul_i32 s55, s3, {PSTR}")
    A("v_lshl_add_u32 v3, v2, 1, v9"); A("v_lshl_add_u32 v3, v3, 4, s55")
    A("v_mov_b32 v2, s55")
    A("s_waitcnt lgkmcnt(0)")
    stamp(4)
    for k in range(4): A(f"v_max3_f32 v{32+4*k}, v{32+4*k}, v{33+4*k}, v{34+4*k}")
    A("v_max3_f32 v32, v32, v35, v36"); A("v_max3_f32 v40, v40, v39, v43"); A("v_max3_f32 v20, v44, v47, v40"); A("v_max_f32 v20, v20, v32")
    for k in range(4): A(f"v_sub_f32 v{16+k}, v{16+k}, v20")
    for k in range(4): A(f"v_mul_f32 v{16+k}, 0x3fb8aa3b, v{16+k}")
    for k in range(4): A(f"v_exp_f32 v{16+k}, v{16+k}")
    A("v_add_f32 v24, v16, v17"); A("v_add_f32 v25, v18, v19"); A("v_add_f32 v24, v24, v25")
    for k in range(4): A(f"v_cvt_pk_bf16_f32 v{16+k}, v{16+k}, v{16+k}")
    A(f"v_add_f32_dpp v24, v24, v24 row_ror:4 {DP}")
    A("v_mul_f32 v25, 0x3e800000, v20"); A("v_mov_b32 v26, 0")
    A(f"v_add_f32_dpp v24, v24, v24 row_ror:8 {DP}")
    A("v_mov_b32 v27, 0")
    A("v_add_f32_dpp v24, v24, v24 row_bcast:15 row_mask:0xa bank_mask:0xf")
    A("v_add_f32_dpp v24, v24, v24 row_bcast:31 row_mask:0xc bank_mask:0xf")
    A("s_bfm_b64 exec, 1, 63")
    A(f"ds_write_b128 v2, v[24:27] offset:{L_PART+512}")
    A("s_mov_b64 exec, -1")
    for i in range(16):
        for d in range(4): A(f"v_and_b32_dpp v{32+4*i+d}, v{16+i%4}, v{4+d} row_newbcast:{4*(i//4)} {DP}")
    stamp(5)
    for i in range(16):
        A(f"s_waitcnt vmcnt({15-i})")
        A(f"v_mfma_f32_16x16x32_bf16 v[28:31], v[{32+4*i}:{35+4*i}], v[{96+4*i}:{99+4*i}], " + ("0" if i == 0 else "v[28:31]"))
    stamp(6)
    A("s_mov_b32 exec_hi, 0")
    A(f"ds_write_b128 v3, v[28:31] offset:{L_PART}")
    A("s_mov_b32 exec_hi, 1")
    A("v_lshlrev_b32 v1, 4, v0")
    A("s_lshl_b32 s55, s31, 3"); A("s_add_u32 s55, s55, s30"); A(f"s_mul_i32 s55, s55, {H1STR}"); A(f"s_add_u32 s55, s55, {H1BASE}")
    A("s_waitcnt lgkmcnt(0)")
    A("s_barrier")
    A("s_cmp_lg_u32 s3, 0"); A("s_cbranch_scc1 L_end")
    for k in range(4): A(f"ds_read_b128 v[{32+4*k}:{35+4*k}], v1 offset:{L_PART+PSTR*k}")
    A("s_waitcnt lgkmcnt(2)")
    A("v_pk_add_f32 v[32:33], v[32:33], v[36:37]"); A("v_pk_add_f32 v[34:35], v[34:35], v[38:39]")
    A("s_waitcnt lgkmcnt(0)")
    A("v_pk_add_f32 v[40:41], v[40:41], v[44:45]"); A("v_pk_add_f32 v[42:43], v[42:43], v[46:47]")
    A("v_pk_add_f32 v[32:33], v[32:33], v[40:41]"); A("v_pk_add_f32 v[34:35], v[34:35], v[42:43]")
    tagq(32)
    A(f"buffer_store_dwordx4 v[32:35], v1, s[48:51], s55 offen {o.st1}")
    stamp(7)
    dump(16, 8, "kv")
    A("L_end:")
    A("s_endpgm")

    txt = HEADER + f"; @launch grid=(256,1,1) block=(512,1,1) lds={LDS_BYTES}\n"
    txt += '.amdgcn_target "amdgcn-amd-amdhsa--gfx950"\n.text\n'
    txt += f".globl {KN}\n.p2align 8\n.type {KN},@function\n{KN}:\n"
    txt += finalize(L)
    txt += f""".section .rodata,"a"
.p2align 6
.amdhsa_kernel {KN}
  .amdhsa_next_free_vgpr 160
  .amdhsa_next_free_sgpr 100
  .amdhsa_accum_offset 160
  .amdhsa_group_segment_fixed_size 0
  .amdhsa_kernarg_size 104
  .amdhsa_user_sgpr_count 2
  .amdhsa_user_sgpr_kernarg_segment_ptr 1
  .amdhsa_system_sgpr_workgroup_id_x 1
  .amdhsa_float_denorm_mode_32 3
.end_amdhsa_kernel
"""
    return txt

def parse(argv):
    p = argparse.ArgumentParser()
    p.add_argument("out")
    p.add_argument("--ld", default="nt"); p.add_argument("--stamps", type=int, default=0)
    p.add_argument("--map", default="sx"); p.add_argument("--pat", default="p0")
    p.add_argument("--h2", default="out"); p.add_argument("--st1", default="sc1"); p.add_argument("--st2", default="sc1")
    p.add_argument("--wait_pub", type=int, default=1); p.add_argument("--spin", type=int, default=200000)
    o = p.parse_args(argv)
    for k in ("ld", "st1", "st2"):
        if getattr(o, k) == "none": setattr(o, k, "")
    return o
if __name__ == "__main__":
    o = parse(sys.argv[1:])
    open(o.out, "w").write(gen(o))
    import build
    print(build.build(o.out))
```

```python
import sys, argparse
from asmlib import finalize
KN = "gated_mix__sliding_block_cached__glu_gated_reglu__decode_kernel"
HEADER = open("gated_mix__sliding_block_cached__glu_gated_reglu__decode.s.ref").read().split("; Override launch")[0]

H0BASE = 4096
H1BASE = H0BASE + 32*4*8*256
H1STR = 640
H2BASE = H1BASE + 256*H1STR
WSUSE = H2BASE + 256*512
L_Q = 0; L_G = 512; L_MX = 528; L_PART = 592; PSTR = 528; L_Y = L_PART + 4*PSTR
LDS_BYTES = L_Y + 8*256

def gen(o):
    L = []
    A = L.append
    ld = o.ld
    nst = [0]
    def stamp(k):
        if o.stamps: A(f"s_memrealtime s[{64+2*k}:{65+2*k}]")
    def dump(base, n, lbl):
        if o.probe:
            role, k0, k1, amp, basec, wg = o.probe.split(":")
            if role != lbl: return
            k0, k1, amp, basec, wg = int(k0), int(k1), int(amp), int(basec), int(wg)
            A("s_waitcnt lgkmcnt(0)")
            if wg >= 0:
                A(f"s_cmp_lg_u32 s2, {wg}"); A("s_cbranch_scc1 L_end")
            A(f"s_sub_u32 s60, s{64+2*k1}, s{64+2*k0}"); A(f"s_mul_i32 s60, s60, {amp}"); A(f"s_add_u32 s60, s60, {basec}")
            A("s_min_u32 s60, s60, 100000")
            A(f"L_spin_{lbl}:")
            A("s_memrealtime s[62:63]"); A("s_waitcnt lgkmcnt(0)"); A("s_sub_u32 s62, s62, s64"); A("s_cmp_lt_u32 s62, s60"); A(f"s_cbranch_scc1 L_spin_{lbl}")
            return
        if not o.stamps: return
        A("s_waitcnt lgkmcnt(0)")
        A("s_mov_b64 exec, 1")
        A("s_lshl_b32 s60, s2, 8"); A("s_add_u32 s62, s28, s60"); A("s_addc_u32 s63, s29, 0")
        A("s_add_u32 s62, s62, 0x8000000"); A("s_addc_u32 s63, s63, 0")
        A("v_mov_b32 v3, 0")
        for k in range(n):
            A(f"v_mov_b32 v4, s{64+2*k}"); A(f"v_mov_b32 v5, s{65+2*k}")
            A(f"global_store_dwordx2 v3, v[4:5], s[62:63] offset:{8*(base+k)}")
            A("s_nop 1")
    def tagq(r):
        for i in range(4): A(f"v_bfi_b32 v{r+i}, v8, s{40+i}, v{r+i}")
    def chk(r, t):
        A(f"v_perm_b32 v{t}, v{r+1}, v{r}, s44")
        A(f"v_perm_b32 v{t+1}, v{r+3}, v{r+2}, s45")
        A(f"v_or_b32 v{t}, v{t}, v{t+1}")
    DP = "row_mask:0xf bank_mask:0xf"
    def red8(op, rs):
        for pat in ("quad_perm:[1,0,3,2]", "quad_perm:[2,3,0,1]", "row_half_mirror"):
            for r in rs: A(f"{op}_dpp v{r}, v{r}, v{r} {pat} {DP}")

    stamp(0)
    A("s_cmp_ge_u32 s2, 256"); A("s_cbranch_scc1 L_end")
    A("s_load_dwordx16 s[4:19], s[0:1], 0")
    A("s_load_dwordx8 s[20:27], s[0:1], 64")
    A("s_load_dwordx2 s[28:29], s[0:1], 96")
    A("v_lshrrev_b32 v1, 6, v0")
    A("v_and_b32 v0, 63, v0")
    A("v_readfirstlane_b32 s3, v1")
    if o.map == "sx":
        A("s_and_b32 s30, s2, 7"); A("s_lshr_b32 s31, s2, 3")
    else:
        A("s_lshr_b32 s30, s2, 5"); A("s_and_b32 s31, s2, 7"); A("s_lshl_b32 s31, s31, 2")
        A("s_bfe_u32 s32, s2, 0x20003"); A("s_add_u32 s31, s31, s32")
    A("v_and_b32 v1, 1, v0"); A("v_lshlrev_b32 v1, 4, v1"); A("v_mov_b32 v2, 0xffff"); A("v_lshlrev_b32 v1, v1, v2")
    A("v_bfe_u32 v2, v0, 1, 2")
    for d in range(4):
        A(f"v_cmp_eq_u32 vcc, {d}, v2"); A(f"v_cndmask_b32 v{4+d}, 0, v1, vcc")
    A("v_mov_b32 v8, 0xff"); A("v_lshrrev_b32 v9, 3, v0"); A("v_and_b32 v10, 7, v0")
    A("s_mov_b32 s35, 0x20000"); A("s_mov_b32 s39, 0x20000"); A("s_mov_b32 s51, 0x20000")
    A("s_mov_b32 s44, 0x0c0c0400"); A("s_mov_b32 s45, 0x04000c0c")
    A("s_cmp_ge_u32 s3, 4"); A("s_cbranch_scc1 L_kv")

    A("s_min_u32 s46, s31, 12"); A("s_mul_i32 s47, s31, 5"); A("s_add_u32 s46, s46, s47")
    A("s_cmp_lt_u32 s31, 12"); A("s_cselect_b32 s47, 6, 5")
    A("s_lshl_b32 s52, s31, 8"); A("s_lshl_b32 s53, s3, 7"); A("s_add_u32 s52, s52, s53")
    A("s_lshl_b32 s53, s46, 4")
    A("s_cmp_lt_u32 s3, 2")
    A("s_cselect_b32 s52, s52, s53"); A("s_movk_i32 s53, 2752"); A("s_cselect_b32 s53, 0x2000, s53")
    A("s_cselect_b32 s54, 8, s47")
    A("s_mov_b32 s34, 1409024"); A("s_cselect_b32 s34, 0x400000, s34")
    A("s_lshl_b32 s55, s30, 3")
    A("v_add_u32 v1, s55, v9"); A("v_lshlrev_b32 v2, 4, v1")
    A("v_lshlrev_b32 v1, 3, v1"); A("v_mul_lo_u32 v1, v1, s53")
    A("v_lshl_add_u32 v1, v10, 4, v1"); A("v_add_u32 v1, s52, v1")
    A("v_mov_b32 v3, 0x40000000"); A("v_cmp_gt_u32 vcc, s54, v10"); A("v_cndmask_b32 v1, v3, v1, vcc")
    A("s_waitcnt lgkmcnt(0)")
    stamp(1)
    A("global_load_dwordx4 v[12:15], v2, s[4:5]")
    A("s_cmp_eq_u32 s3, 2"); A("s_cselect_b64 s[32:33], s[16:17], s[18:19]")
    A("s_cmp_lt_u32 s3, 2"); A("s_cselect_b64 s[32:33], s[10:11], s[32:33]")
    A("s_and_b32 s33, s33, 0xffff")
    A("s_mov_b32 s55, 0")
    for i in range(8):
        A(f"buffer_load_dwordx4 v[{16+4*i}:{19+4*i}], v1, s[32:35], s55 offen {ld}")
        if i < 7: A("s_add_u32 s55, s55, s53")
    A("s_load_dword s40, s[28:29], 0")
    A("s_mov_b32 s48, s28"); A("s_and_b32 s49, s29, 0xffff"); A(f"s_mov_b32 s50, {WSUSE}")
    A("s_cmp_lg_u32 s3, 3"); A("s_cbranch_scc1 L_f_nog1")
    A("v_lshlrev_b32 v2, 4, v0")
    A("global_load_dwordx4 v[84:87], v2, s[4:5]")
    A("global_load_dwordx4 v[88:91], v2, s[22:23]")
    A("s_waitcnt vmcnt(10)"); A("s_branch L_f_g1")
    A("L_f_nog1:")
    A("s_waitcnt vmcnt(8)")
    A("L_f_g1:")
    A("s_mov_b32 s56, 0x01000100"); A("s_mov_b32 s57, 0x03020302")
    for i in range(8):
        A(f"v_perm_b32 v11, v{12+i//2}, v{12+i//2}, s{56+i%2}")
        for d in range(4): A(f"v_and_b32 v{48+4*i+d}, v11, v{4+d}")
    A("s_lshl_b32 s56, s31, 2"); A("s_add_u32 s56, s56, s3"); A("s_lshl_b32 s56, s56, 11"); A(f"s_add_u32 s56, s56, {H0BASE}")
    A("s_lshl_b32 s57, s30, 8"); A("s_add_u32 s57, s57, s56")
    A("v_lshrrev_b32 v1, 4, v0"); A("v_lshl_add_u32 v1, v10, 1, v1"); A("v_lshlrev_b32 v1, 4, v1")
    A("v_lshlrev_b32 v2, 8, v10"); A("v_lshl_add_u32 v2, v9, 4, v2")
    A("s_waitcnt lgkmcnt(0)")
    A("s_add_u32 s40, s40, 0x01010101"); A("s_lshr_b32 s41, s40, 8"); A("s_lshr_b32 s42, s40, 16"); A("s_lshr_b32 s43, s40, 24")
    A("s_waitcnt vmcnt(0)")
    stamp(2)
    for i in range(8):
        A(f"v_mfma_f32_16x16x32_bf16 v[80:83], v[{48+4*i}:{51+4*i}], v[{16+4*i}:{19+4*i}], " + ("0" if i == 0 else "v[80:83]"))
    for i in range(4): A(f"v_permlane32_swap_b32 v{80+i}, v{12+i}")
    for i in range(4): A(f"v_add_f32_dpp v{80+i}, v{12+i}, v{80+i} row_ror:8 {DP}")
    tagq(80)
    A("s_mov_b64 exec, 0x00ff00ff")
    A("buffer_store_dwordx4 v[80:83], v1, s[48:51], s57 offen sc1")
    A("s_mov_b64 exec, -1")
    stamp(3)
    A("s_cmp_lg_u32 s3, 3"); A("s_cbranch_scc1 L_f_nog2")
    for i in range(4):
        A(f"v_lshlrev_b32 v16, 16, v{84+i}"); A(f"v_and_b32 v17, 0xffff0000, v{84+i}")
        A(f"v_lshlrev_b32 v18, 16, v{88+i}"); A(f"v_and_b32 v19, 0xffff0000, v{88+i}")
        A("v_mul_f32 v16, v16, v18"); A("v_mul_f32 v17, v17, v19")
        A("v_cvt_pk_bf16_f32 v16, v16, v17")
        A("v_lshlrev_b32 v17, 16, v16"); A("v_and_b32 v16, 0xffff0000, v16")
        if i == 0: A("v_add_f32 v20, v16, v17")
        else: A("v_add_f32 v20, v20, v16"); A("v_add_f32 v20, v20, v17")
    red8("v_add_f32", [20])
    A(f"v_add_f32_dpp v20, v20, v20 row_ror:8 {DP}")
    A("v_add_f32_dpp v20, v20, v20 row_bcast:15 row_mask:0xa bank_mask:0xf")
    A("v_add_f32_dpp v20, v20, v20 row_bcast:31 row_mask:0xc bank_mask:0xf")
    A("v_cvt_pk_bf16_f32 v20, v20, v20"); A("v_and_b32 v20, 0xffff0000, v20")
    A("v_mul_f32 v20, 0xbfb8aa3b, v20"); A("v_exp_f32 v20, v20"); A("v_add_f32 v20, 1.0, v20"); A("v_rcp_f32 v20, v20")
    A("v_cvt_pk_bf16_f32 v20, v20, v20"); A("v_and_b32 v20, 0xffff0000, v20")
    A("v_sub_f32 v21, 1.0, v20"); A("v_cvt_pk_bf16_f32 v21, v21, v21"); A("v_and_b32 v21, 0xffff0000, v21")
    A(f"v_mov_b32 v22, {L_G}")
    A("s_bfm_b64 exec, 1, 63")
    A("ds_write_b64 v22, v[20:21]")
    A("s_mov_b64 exec, -1")
    A("L_f_nog2:")
    if o.wait_pub: A("s_waitcnt vmcnt(0)")
    stamp(4)
    A(f"s_mov_b32 s58, {o.spin}")
    A("L_p0:")
    A("buffer_load_dwordx4 v[16:19], v2, s[48:51], s56 offen sc1")
    A("buffer_load_dwordx4 v[20:23], v2, s[48:51], s56 offen offset:128 sc1")
    A("s_sub_u32 s58, s58, 1"); A("s_cbranch_scc1 L_end")
    A("s_waitcnt vmcnt(0)")
    chk(16, 24); chk(20, 26)
    A("v_cmp_eq_u32 vcc, s40, v24"); A("v_cmp_eq_u32 s[60:61], s40, v26"); A("s_and_b64 vcc, vcc, s[60:61]")
    A("s_cmp_eq_u64 vcc, exec"); A("s_cbranch_scc0 L_p0")
    stamp(5)
    for r in range(16, 24): A(f"v_and_b32 v{r}, 0xffffff00, v{r}")
    red8("v_add_f32", list(range(16, 24)))
    A("v_cvt_pk_bf16_f32 v16, v16, v17"); A("v_cvt_pk_bf16_f32 v17, v18, v19")
    A("v_cvt_pk_bf16_f32 v18, v20, v21"); A("v_cvt_pk_bf16_f32 v19, v22, v23")
    A("s_lshl_b32 s55, s3, 7"); A("v_lshl_add_u32 v1, v9, 3, s55")
    A("ds_write_b64 v1, v[16:17]"); A("ds_write_b64 v1, v[18:19] offset:64")
    A("s_mov_b32 s32, s12"); A("s_and_b32 s33, s13, 0xffff"); A("s_mov_b32 s34, 0x400000")
    A("s_mov_b32 s36, s20"); A("s_and_b32 s37, s21, 0xffff"); A("s_mov_b32 s38, 1409024")
    A("s_lshl_b32 s55, s31, 17"); A("s_lshl_b32 s56, s3, 15"); A("s_add_u32 s55, s55, s56"); A("s_lshl_b32 s56, s30, 7"); A("s_add_u32 s55, s55, s56")
    A("v_lshlrev_b32 v2, 4, v10"); A("v_lshl_add_u32 v1, v9, 12, v2")
    A("v_lshl_add_u32 v2, v9, 10, v2")
    A("s_add_u32 s57, s46, s3"); A("s_lshl_b32 s57, s57, 13"); A("s_add_u32 s56, s56, s57")
    A("s_add_u32 s57, s3, 4"); A("s_cmp_lt_u32 s57, s47"); A("s_mov_b32 s57, 0x40000000"); A("s_cselect_b32 s57, 0x8000, s57"); A("v_add_u32 v11, s57, v2")
    A("s_waitcnt lgkmcnt(0)")
    A("s_barrier")
    stamp(6)
    A("s_lshl_b32 s59, s3, 4"); A("v_lshl_add_u32 v3, v9, 1, s59")
    A("ds_read_u16 v40, v3 offset:256"); A("ds_read_u16 v41, v3 offset:384")
    A("ds_read_u16 v42, v3 offset:320"); A("ds_read_u16 v43, v3 offset:448")
    A(f"v_mov_b32 v3, {L_G}"); A("ds_read_b64 v[44:45], v3")
    A("s_barrier")
    A(f"buffer_load_dwordx4 v[16:19], v2, s[36:39], s56 offen {ld}")
    A(f"buffer_load_dwordx4 v[20:23], v11, s[36:39], s56 offen {ld}")
    for i in range(4): A(f"buffer_load_dwordx4 v[{24+4*i}:{27+4*i}], v1, s[32:35], s55 offen offset:{1024*i} {ld}")
    stamp(7)
    A("s_waitcnt lgkmcnt(0)")
    for t in range(2):
        A(f"v_lshlrev_b32 v{40+2*t}, 16, v{40+2*t}"); A(f"v_lshlrev_b32 v{41+2*t}, 16, v{41+2*t}")
        A(f"v_max_f32 v{40+2*t}, 0, v{40+2*t}"); A(f"v_mul_f32 v{40+2*t}, v{40+2*t}, v{41+2*t}")
        A(f"v_cvt_pk_bf16_f32 v{40+2*t}, v{40+2*t}, v{40+2*t}")
        for d in range(4): A(f"v_and_b32 v{48+4*t+d}, v{40+2*t}, v{4+d}")
    A(f"s_mul_i32 s56, s31, {8*H1STR}"); A(f"s_add_u32 s56, s56, {H1BASE}"); A("s_lshl_b32 s57, s3, 7"); A("s_add_u32 s57, s57, s56")
    A(f"v_mul_u32_u24 v2, {H1STR}, v10"); A("v_lshl_add_u32 v1, v9, 4, v2")
    A("v_bfe_u32 v3, v0, 4, 1"); A("v_lshl_add_u32 v3, v10, 1, v3"); A("v_lshlrev_b32 v3, 4, v3")
    A("v_lshrrev_b32 v11, 5, v0"); A("v_lshl_add_u32 v3, v11, 8, v3"); A("s_lshl_b32 s59, s3, 9"); A("v_add_u32 v3, s59, v3")
    A("s_barrier")
    stamp(8)
    A("s_waitcnt vmcnt(4)")
    A("v_mfma_f32_16x16x32_bf16 v[80:83], v[48:51], v[16:19], 0")
    A("v_mfma_f32_16x16x32_bf16 v[80:83], v[52:55], v[20:23], v[80:83]")
    for i in range(4): A(f"v_mul_f32 v{80+i}, v45, v{80+i}")
    A(f"s_mov_b32 s58, {o.spin}")
    A("L_p1:")
    A("buffer_load_dwordx4 v[16:19], v1, s[48:51], s57 offen sc1")
    A("buffer_load_dwordx4 v[20:23], v2, s[48:51], s56 offen offset:512 sc1")
    A("s_sub_u32 s58, s58, 1"); A("s_cbranch_scc1 L_end")
    A("s_waitcnt vmcnt(0)")
    chk(16, 40); chk(20, 42)
    A("v_cmp_eq_u32 vcc, s40, v40"); A("v_cmp_eq_u32 s[60:61], s40, v42"); A("s_and_b64 vcc, vcc, s[60:61]")
    A("s_cmp_eq_u64 vcc, exec"); A("s_cbranch_scc0 L_p1")
    stamp(9)
    A("v_and_b32 v21, 0xffff0000, v21")
    A("v_and_b32 v20, 0xffffff00, v20"); A("v_and_b32 v16, 0xffffff00, v16")
    A(f"v_max_f32_dpp v22, v21, v21 quad_perm:[1,0,3,2] {DP}")
    A("v_and_b32 v17, 0xffffff00, v17"); A("v_and_b32 v18, 0xffffff00, v18")
    A(f"v_max_f32_dpp v22, v22, v22 quad_perm:[2,3,0,1] {DP}")
    A("v_and_b32 v19, 0xffffff00, v19")
    A(f"v_max_f32_dpp v22, v22, v22 row_half_mirror {DP}")
    A("v_sub_f32 v21, v21, v22"); A("v_mul_f32 v21, 0x3fb8aa3b, v21"); A("v_exp_f32 v21, v21")
    for r in (20, 16, 17, 18, 19): A(f"v_mul_f32 v{r}, v21, v{r}")
    red8("v_add_f32", [20, 16, 17, 18, 19])
    A("v_rcp_f32 v20, v20"); A("v_mul_f32 v20, v44, v20")
    for i in range(4): A(f"v_mul_f32 v{16+i}, v20, v{16+i}")
    for i in range(4): A(f"v_cvt_pk_bf16_f32 v{16+i}, v{16+i}, v{16+i}")
    for i in range(4):
        for d in range(4): A(f"v_and_b32 v{48+4*i+d}, v{16+i}, v{4+d}")
        if i: A(f"v_mfma_f32_16x16x32_bf16 v[80:83], v[{44+4*i}:{47+4*i}], v[{20+4*i}:{23+4*i}], v[80:83]")
    A("v_mfma_f32_16x16x32_bf16 v[80:83], v[60:63], v[36:39], v[80:83]")
    A("s_mov_b32 exec_lo, 0x00ff00ff"); A("s_mov_b32 exec_hi, 0xff00ff00")
    A(f"ds_write_b128 v3, v[80:83] offset:{L_Y}")
    A("s_mov_b64 exec, -1")
    A("s_waitcnt lgkmcnt(0)")
    A("s_barrier")
    A("s_cmp_lg_u32 s3, 0"); A("s_cbranch_scc1 L_end")
    A("s_mov_b32 exec_hi, 0")
    A("v_lshlrev_b32 v1, 3, v0")
    for k in range(8): A(f"ds_read_b64 v[{16+2*k}:{17+2*k}], v1 offset:{L_Y+256*k}")
    A("s_lshl_b32 s56, s30, 14"); A(f"s_add_u32 s56, s56, {H2BASE}")
    if o.h2 == "out":
        A("s_lshl_b32 s57, s31, 9"); A("s_add_u32 s57, s57, s56"); A("v_lshlrev_b32 v1, 4, v0")
        A("s_lshl_b32 s55, s31, 4"); A("s_add_u32 s56, s56, s55"); A("v_lshlrev_b32 v2, 9, v0")
    else:
        A("s_lshl_b32 s57, s31, 4"); A("s_add_u32 s57, s57, s56"); A("v_lshlrev_b32 v1, 9, v0")
        A("s_lshl_b32 s55, s31, 9"); A("s_add_u32 s56, s56, s55"); A("v_lshlrev_b32 v2, 4, v0")
    A("s_not_b32 s41, s40")
    A("v_mov_b32 v34, s40"); A("v_mov_b32 v35, s41")
    A("s_waitcnt lgkmcnt(0)")
    for k in range(4): A(f"v_pk_add_f32 v[{16+4*k}:{17+4*k}], v[{16+4*k}:{17+4*k}], v[{18+4*k}:{19+4*k}]")
    A("v_pk_add_f32 v[16:17], v[16:17], v[20:21]"); A("v_pk_add_f32 v[24:25], v[24:25], v[28:29]")
    A("v_pk_add_f32 v[32:33], v[16:17], v[24:25]")
    A(f"buffer_store_dwordx4 v[32:35], v1, s[48:51], s57 offen {o.st2}")
    stamp(10)
    A(f"s_mov_b32 s58, {o.spin}")
    A("L_p2:")
    A("buffer_load_dwordx4 v[16:19], v2, s[48:51], s56 offen sc1")
    A("s_sub_u32 s58, s58, 1"); A("s_cbranch_scc1 L_end")
    A("s_waitcnt vmcnt(0)")
    A("v_cmp_eq_u64 vcc, s[40:41], v[18:19]")
    A("s_cmp_eq_u64 vcc, exec"); A("s_cbranch_scc0 L_p2")
    stamp(11)
    red8("v_add_f32", [16, 17])
    for r in (16, 17): A(f"v_add_f32_dpp v{r}, v{r}, v{r} row_ror:8 {DP}")
    for r in (16, 17): A(f"v_add_f32_dpp v{r}, v{r}, v{r} row_bcast:15 row_mask:0xa bank_mask:0xf")
    A("v_cvt_pk_bf16_f32 v16, v16, v17")
    A("s_lshl_b32 s55, s30, 7"); A("s_lshl_b32 s56, s31, 2"); A("s_add_u32 s55, s55, s56")
    A("v_mov_b32 v1, s55")
    A("s_mov_b32 exec_lo, 0x80000000")
    A("global_store_dword v1, v16, s[24:25]")
    A("s_cmp_lg_u32 s2, 0"); A("s_cbranch_scc1 L_f_fin")
    A("v_mov_b32 v1, 0")
    A("global_store_dword v1, v34, s[28:29]")
    A("L_f_fin:")
    stamp(12)
    dump(0, 13, "f")
    A("s_endpgm")

    A("L_kv:")
    A("s_sub_u32 s3, s3, 4")
    if o.pat in ("p0", "p1"):
        A("s_lshl_b32 s52, s30, 16"); A("s_lshl_b32 s53, s3, 14"); A("s_add_u32 s52, s52, s53"); stride = 1024
    elif o.pat in ("p2", "p2r"):
        A("s_lshl_b32 s52, s30, 16"); A("s_lshl_b32 s53, s3, 10"); A("s_add_u32 s52, s52, s53"); stride = 4096
    else:
        A("s_lshl_b32 s52, s30, 12"); A("s_lshl_b32 s53, s3, 10"); A("s_add_u32 s52, s52, s53"); stride = 32768
    A("s_lshl_b32 s53, s31, 21"); A("s_add_u32 s52, s52, s53"); A("s_add_u32 s52, s52, 0x180000")
    A("v_lshl_add_u32 v1, v0, 4, s52")
    if o.pat in ("p1", "p2r", "p3r"):
        A("s_and_b32 s54, s31, 15"); A(f"s_mul_i32 s54, s54, {stride}")
    else:
        A("s_mov_b32 s54, 0")
    A("s_mov_b32 s34, 0x4000000"); A("s_mov_b32 s38, 0x4000000")
    A("s_waitcnt lgkmcnt(0)")
    A("s_mov_b32 s32, s6"); A("s_and_b32 s33, s7, 0xffff"); A("s_mov_b32 s36, s8"); A("s_and_b32 s37, s9, 0xffff")
    for m in range(2):
        for i in range(16):
            r = 32 + 64*m + 4*i
            A(f"buffer_load_dwordx4 v[{r}:{r+3}], v1, s[{32+4*m}:{35+4*m}], s54 offen {ld}")
            A(f"s_add_u32 s54, s54, {stride}"); A(f"s_and_b32 s54, s54, {16*stride-1}")
        if m == 0: stamp(1)
    A("s_load_dword s40, s[28:29], 0")
    A("s_mov_b32 s48, s28"); A("s_and_b32 s49, s29, 0xffff"); A(f"s_mov_b32 s50, {WSUSE}")
    A("v_and_b32 v2, 15, v0"); A("v_lshlrev_b32 v3, 4, v2")
    stamp(2)
    A("s_barrier")
    A("ds_read_b128 v[12:15], v3")
    A("v_lshrrev_b32 v9, 4, v0")
    A("s_lshl_b32 s55, s3, 4"); A("v_lshl_add_u32 v11, v9, 2, s55")
    A("s_waitcnt vmcnt(16) lgkmcnt(0)")
    stamp(3)
    for d in range(4):
        for i in range(16):
            A(f"v_dot2_f32_bf16 v{16+i}, v{32+4*i+d}, v{12+d}, " + ("0" if d == 0 else f"v{16+i}"))
    for k in range(8): A(f"v_add_f32_dpp v{16+k}, v{16+k}, v{16+k} row_ror:8 row_mask:0xf bank_mask:0x3")
    for k in range(8): A(f"v_add_f32_dpp v{16+k}, v{24+k}, v{24+k} row_ror:8 row_mask:0xf bank_mask:0xc")
    for k in range(4): A(f"v_add_f32_dpp v{16+k}, v{16+k}, v{16+k} row_half_mirror row_mask:0xf bank_mask:0x5")
    for k in range(4): A(f"v_add_f32_dpp v{16+k}, v{20+k}, v{20+k} row_half_mirror row_mask:0xf bank_mask:0xa")
    for pat in ("quad_perm:[1,0,3,2]", "quad_perm:[2,3,0,1]"):
        for k in range(4): A(f"v_add_f32_dpp v{16+k}, v{16+k}, v{16+k} {pat} {DP}")
    for k in range(4): A(f"v_cvt_pk_bf16_f32 v{16+k}, v{16+k}, v{16+k}")
    for k in range(4): A(f"v_and_b32 v{16+k}, 0xffff0000, v{16+k}")
    for k in range(4): A(f"v_mul_f32 v{16+k}, 0x3db504f3, v{16+k}")
    for k in range(4): A(f"v_cvt_pk_bf16_f32 v{16+k}, v{16+k}, v{16+k}")
    for k in range(4): A(f"v_and_b32 v{16+k}, 0xffff0000, v{16+k}")
    A("v_max3_f32 v20, v16, v17, v18"); A("v_max_f32 v20, v20, v19")
    A(f"v_max_f32_dpp v20, v20, v20 row_ror:4 {DP}"); A(f"v_max_f32_dpp v20, v20, v20 row_ror:8 {DP}")
    A(f"ds_write_b32 v11, v20 offset:{L_MX}")
    A(f"v_mov_b32 v11, {L_MX}")
    A("s_add_u32 s40, s40, 0x01010101"); A("s_lshr_b32 s41, s40, 8"); A("s_lshr_b32 s42, s40, 16"); A("s_lshr_b32 s43, s40, 24")
    A("s_waitcnt lgkmcnt(0)")
    A("s_barrier")
    for k in range(4): A(f"ds_read_b128 v[{32+4*k}:{35+4*k}], v11 offset:{16*k}")
    A(f"s_mul_i32 s55, s3, {PSTR}")
    A("v_lshl_add_u32 v3, v2, 1, v9"); A("v_lshl_add_u32 v3, v3, 4, s55")
    A("v_mov_b32 v2, s55")
    A("s_waitcnt lgkmcnt(0)")
    stamp(4)
    for k in range(4): A(f"v_max3_f32 v{32+4*k}, v{32+4*k}, v{33+4*k}, v{34+4*k}")
    A("v_max3_f32 v32, v32, v35, v36"); A("v_max3_f32 v40, v40, v39, v43"); A("v_max3_f32 v20, v44, v47, v40"); A("v_max_f32 v20, v20, v32")
    for k in range(4): A(f"v_sub_f32 v{16+k}, v{16+k}, v20")
    for k in range(4): A(f"v_mul_f32 v{16+k}, 0x3fb8aa3b, v{16+k}")
    for k in range(4): A(f"v_exp_f32 v{16+k}, v{16+k}")
    A("v_add_f32 v24, v16, v17"); A("v_add_f32 v25, v18, v19"); A("v_add_f32 v24, v24, v25")
    for k in range(4): A(f"v_cvt_pk_bf16_f32 v{16+k}, v{16+k}, v{16+k}")
    A(f"v_add_f32_dpp v24, v24, v24 row_ror:4 {DP}")
    A("v_mul_f32 v25, 0x3e800000, v20"); A("v_mov_b32 v26, 0")
    A(f"v_add_f32_dpp v24, v24, v24 row_ror:8 {DP}")
    A("v_mov_b32 v27, 0")
    A("v_add_f32_dpp v24, v24, v24 row_bcast:15 row_mask:0xa bank_mask:0xf")
    A("v_add_f32_dpp v24, v24, v24 row_bcast:31 row_mask:0xc bank_mask:0xf")
    A("s_bfm_b64 exec, 1, 63")
    A(f"ds_write_b128 v2, v[24:27] offset:{L_PART+512}")
    A("s_mov_b64 exec, -1")
    for i in range(16):
        for d in range(4): A(f"v_and_b32_dpp v{32+4*i+d}, v{16+i%4}, v{4+d} row_newbcast:{4*(i//4)} {DP}")
    stamp(5)
    for i in range(16):
        A(f"s_waitcnt vmcnt({15-i})")
        A(f"v_mfma_f32_16x16x32_bf16 v[28:31], v[{32+4*i}:{35+4*i}], v[{96+4*i}:{99+4*i}], " + ("0" if i == 0 else "v[28:31]"))
    stamp(6)
    A("s_mov_b32 exec_hi, 0")
    A(f"ds_write_b128 v3, v[28:31] offset:{L_PART}")
    A("s_mov_b32 exec_hi, 1")
    A("v_lshlrev_b32 v1, 4, v0")
    A("s_lshl_b32 s55, s31, 3"); A("s_add_u32 s55, s55, s30"); A(f"s_mul_i32 s55, s55, {H1STR}"); A(f"s_add_u32 s55, s55, {H1BASE}")
    A("s_waitcnt lgkmcnt(0)")
    A("s_barrier")
    A("s_cmp_lg_u32 s3, 0"); A("s_cbranch_scc1 L_end")
    for k in range(4): A(f"ds_read_b128 v[{32+4*k}:{35+4*k}], v1 offset:{L_PART+PSTR*k}")
    A("s_waitcnt lgkmcnt(2)")
    A("v_pk_add_f32 v[32:33], v[32:33], v[36:37]"); A("v_pk_add_f32 v[34:35], v[34:35], v[38:39]")
    A("s_waitcnt lgkmcnt(0)")
    A("v_pk_add_f32 v[40:41], v[40:41], v[44:45]"); A("v_pk_add_f32 v[42:43], v[42:43], v[46:47]")
    A("v_pk_add_f32 v[32:33], v[32:33], v[40:41]"); A("v_pk_add_f32 v[34:35], v[34:35], v[42:43]")
    tagq(32)
    A(f"buffer_store_dwordx4 v[32:35], v1, s[48:51], s55 offen {o.st1}")
    stamp(7)
    dump(16, 8, "kv")
    A("L_end:")
    A("s_endpgm")

    txt = HEADER + f"; @launch grid=(256,1,1) block=(512,1,1) lds={LDS_BYTES}\n"
    txt += '.amdgcn_target "amdgcn-amd-amdhsa--gfx950"\n.text\n'
    txt += f".globl {KN}\n.p2align 8\n.type {KN},@function\n{KN}:\n"
    txt += finalize(L)
    txt += f""".section .rodata,"a"
.p2align 6
.amdhsa_kernel {KN}
  .amdhsa_next_free_vgpr 160
  .amdhsa_next_free_sgpr 100
  .amdhsa_accum_offset 160
  .amdhsa_group_segment_fixed_size 0
  .amdhsa_kernarg_size 104
  .amdhsa_user_sgpr_count 2
  .amdhsa_user_sgpr_kernarg_segment_ptr 1
  .amdhsa_system_sgpr_workgroup_id_x 1
  .amdhsa_float_denorm_mode_32 3
.end_amdhsa_kernel
"""
    return txt

def parse(argv):
    p = argparse.ArgumentParser()
    p.add_argument("out")
    p.add_argument("--ld", default="nt"); p.add_argument("--stamps", type=int, default=0)
    p.add_argument("--map", default="sx"); p.add_argument("--pat", default="p0")
    p.add_argument("--h2", default="out"); p.add_argument("--st1", default="sc1"); p.add_argument("--st2", default="sc1")
    p.add_argument("--probe", default="")
    p.add_argument("--wait_pub", type=int, default=1); p.add_argument("--spin", type=int, default=200000)
    o = p.parse_args(argv)
    for k in ("ld", "st1", "st2"):
        if getattr(o, k) == "none": setattr(o, k, "")
    return o
if __name__ == "__main__":
    o = parse(sys.argv[1:])
    open(o.out, "w").write(gen(o))
    import build
    print(build.build(o.out))
```

```python
import sys, argparse, subprocess, re
from asmlib import finalize
KN = "gated_mix__sliding_block_cached__glu_gated_reglu__decode_kernel"
HEADER = open("gated_mix__sliding_block_cached__glu_gated_reglu__decode.s.ref").read().split("; Override launch")[0]

H0BASE = 4096
H1BASE = H0BASE + 32*4*8*256
H1STR = 33*128
GOFF = 0x80000
H2BASE = 2*GOFF
WSUSE = H2BASE + 256*512
L_Q = 0; L_G = 512; L_MX = 528; L_LM = L_MX + 128; L_FL = L_LM + 64; L_PART = 768; PSTR = 576; L_Y = L_PART + 8*PSTR
LDS_BYTES = L_Y + 8*256
DP = "row_mask:0xf bank_mask:0xf"

def gen(o, pads=None):
    L = []
    A = L.append
    ld = o.ld
    spots = [0]
    def spot():
        k = spots[0]; spots[0] += 1
        A(f"SP{k}:")
        if pads and k in pads: A("s_cbranch_execz L_back")
    def stamp(k):
        if o.stamps: A(f"s_memrealtime s[{64+2*k}:{65+2*k}]")
    def dump(base, n, lbl):
        if o.probe:
            role, k0, k1, amp, basec, wg = o.probe.split(":")
            if role != lbl: return
            k0, k1, amp, basec, wg = int(k0), int(k1), int(amp), int(basec), int(wg)
            A("s_waitcnt lgkmcnt(0)")
            if wg >= 0:
                A(f"s_cmp_lg_u32 s2, {wg}"); A("s_cbranch_scc1 L_end")
            A(f"s_sub_u32 s60, s{64+2*k1}, s{64+2*k0}"); A(f"s_mul_i32 s60, s60, {amp}"); A(f"s_add_u32 s60, s60, {basec}")
            A("s_min_u32 s60, s60, 100000")
            A(f"L_spin_{lbl}:")
            A("s_memrealtime s[62:63]"); A("s_waitcnt lgkmcnt(0)"); A("s_sub_u32 s62, s62, s64"); A("s_cmp_lt_u32 s62, s60"); A(f"s_cbranch_scc1 L_spin_{lbl}")
            return
        if not o.stamps: return
        A("s_waitcnt lgkmcnt(0)")
        A("s_mov_b64 exec, 1")
        A("s_lshl_b32 s60, s2, 8"); A("s_add_u32 s62, s28, s60"); A("s_addc_u32 s63, s29, 0")
        A("s_add_u32 s62, s62, 0x8000000"); A("s_addc_u32 s63, s63, 0")
        A("v_mov_b32 v3, 0")
        for k in range(n):
            A(f"v_mov_b32 v4, s{64+2*k}"); A(f"v_mov_b32 v5, s{65+2*k}")
            A(f"global_store_dwordx2 v3, v[4:5], s[62:63] offset:{8*(base+k)}")
            A("s_nop 1")
    def tagq(r):
        for i in range(4): A(f"v_bfi_b32 v{r+i}, v8, s{40+i}, v{r+i}")
    def chk(r, t):
        A(f"v_perm_b32 v{t}, v{r+1}, v{r}, s44")
        A(f"v_perm_b32 v{t+1}, v{r+3}, v{r+2}, s45")
        A(f"v_or_b32 v{t}, v{t}, v{t+1}")
    def red8(op, rs):
        for pat in ("quad_perm:[1,0,3,2]", "quad_perm:[2,3,0,1]", "row_half_mirror"):
            for r in rs: A(f"{op}_dpp v{r}, v{r}, v{r} {pat} {DP}")
    def masks():
        A("v_and_b32 v2, 1, v0"); A("v_lshlrev_b32 v2, 4, v2"); A("v_mov_b32 v3, 0xffff"); A("v_lshlrev_b32 v2, v2, v3")
        A("v_bfe_u32 v3, v0, 1, 2")
        for d in range(4):
            A(f"v_cmp_eq_u32 vcc, {d}, v3"); A(f"v_cndmask_b32 v{4+d}, 0, v2, vcc")
        A("v_mov_b32 v8, 0xff")
    def wssrd():
        A("s_load_dword s40, s[28:29], 0")
        A("s_mov_b32 s48, s28"); A("s_and_b32 s49, s29, 0xffff"); A(f"s_mov_b32 s50, {WSUSE}"); A("s_mov_b32 s51, 0x20000")
    def tags():
        A("s_getreg_b32 s99, hwreg(HW_REG_XCC_ID, 0, 4)"); A("s_lshl_b32 s99, s99, 24")
        A("s_add_u32 s94, s40, 0x01010101"); A("s_xor_b32 s40, s94, s99")
        A("s_lshr_b32 s41, s40, 8"); A("s_lshr_b32 s42, s40, 16"); A("s_lshr_b32 s43, s40, 24")
    def pubL(regs, va, so):
        A(f"buffer_store_dwordx4 {regs}, {va}, s[48:51], {so} offen")
        A(f"s_add_u32 {so}, {so}, {GOFF}")
    def pubG(r, va, so):
        A("s_lshr_b32 s60, s94, 24"); A(f"v_bfi_b32 v{r+3}, v8, s60, v{r+3}")
        A(f"buffer_store_dwordx4 v[{r}:{r+3}], {va}, s[48:51], {so} offen sc1")
    def timeout(name, lo, hi, r, va, so, addrs):
        A(f"L_{name}_to:")
        A("s_sub_u32 s93, s93, 1"); A("s_cbranch_scc1 L_end")
        A("s_cmp_lg_u32 s59, 0"); A(f"s_cbranch_scc1 L_{name}_t2")
        A("s_mov_b32 s59, 1")
        A(f"s_mov_b32 exec_lo, {lo}"); A(f"s_mov_b32 exec_hi, {hi}")
        pubG(r, va, so)
        A("s_mov_b64 exec, -1")
        A(f"L_{name}_t2:")
        for a in addrs: A(f"s_xor_b32 {a}, {a}, {GOFF}")
        A("s_xor_b32 s92, s92, s99"); A("s_mov_b32 s58, 0"); A(f"s_branch L_{name}_ld")

    stamp(0)
    A("s_load_dwordx16 s[4:19], s[0:1], 0")
    A("s_load_dwordx8 s[20:27], s[0:1], 64")
    A("s_load_dwordx2 s[28:29], s[0:1], 96")
    A("s_cmp_ge_u32 s2, 256"); A("s_cbranch_scc1 L_end")
    if o.scramble:
        A("s_lshr_b32 s3, s2, 5"); A("s_and_b32 s3, s3, %d" % o.scramble); A("s_xor_b32 s2, s2, s3")
    A("v_lshrrev_b32 v1, 6, v0")
    A("v_and_b32 v0, 63, v0")
    A("v_readfirstlane_b32 s3, v1")
    A("s_lshr_b32 s30, s2, 5")
    A("s_and_b32 s63, s2, 7"); A("s_lshl_b32 s63, s63, 2"); A("s_bfe_u32 s32, s2, 0x20003"); A("s_add_u32 s63, s63, s32")
    if o.hmap == "lo": A("s_and_b32 s31, s2, 31")
    else: A("s_mov_b32 s31, s63")
    A("s_mov_b32 s35, 0x20000"); A("s_mov_b32 s39, 0x20000")
    A("s_cmp_lt_u32 s3, 4"); A("s_cbranch_scc1 L_f")
    A("s_sub_u32 s3, s3, 4")
    A("s_lshl_b32 s52, s30, 16"); A("s_lshl_b32 s53, s31, 21"); A("s_add_u32 s52, s52, s53"); A("s_add_u32 s52, s52, 0x180000")
    A("v_lshl_add_u32 v1, v0, 4, s52")
    A("s_lshl_b32 s54, s30, 1"); A("s_add_u32 s54, s54, s31"); A("s_lshl_b32 s54, s54, 2"); A("s_add_u32 s54, s54, s3"); A("s_lshl_b32 s54, s54, 10")
    A("s_mov_b32 s55, 0xffff"); A("s_movk_i32 s56, 0x2000")
    A("s_and_b32 s54, s54, s55")
    A("s_mov_b32 s34, 0x4000000"); A("s_mov_b32 s38, 0x4000000")
    A("s_waitcnt lgkmcnt(0)")
    stamp(1)
    A("s_mov_b32 s32, s6"); A("s_and_b32 s33, s7, s55"); A("s_mov_b32 s36, s8"); A("s_and_b32 s37, s9, s55")
    def kvload(n):
        m, i = divmod(n, 8)
        r = 32 + 4*n
        A(f"buffer_load_dwordx4 v[{r}:{r+3}], v1, s[{32+4*m}:{35+4*m}], s54 offen {ld}")
        if n < 15:
            A("s_add_u32 s54, s54, s56"); A("s_and_b32 s54, s54, s55")
    nfirst = o.depth0 if o.depth0 else 8
    for n in range(nfirst):
        kvload(n)
        if n == 7: stamp(8)
    if pads:
        A("s_mov_b64 exec, 0")
        for w, k in enumerate(pads):
            A(f"s_cmp_eq_u32 s3, {w}"); A(f"s_cbranch_scc1 SP{k}")
        A("L_back:")
        A("s_mov_b64 exec, -1")
    A("s_branch L_kv")

    A("L_f:")
    A("v_lshrrev_b32 v9, 3, v0"); A("v_and_b32 v10, 7, v0")
    A("s_min_u32 s46, s63, 12"); A("s_mul_i32 s47, s63, 5"); A("s_add_u32 s46, s46, s47")
    A("s_cmp_lt_u32 s63, 12"); A("s_cselect_b32 s47, 6, 5")
    A("s_lshl_b32 s52, s31, 8"); A("s_lshl_b32 s53, s3, 7"); A("s_add_u32 s52, s52, s53")
    A("s_lshl_b32 s53, s46, 4")
    A("s_cmp_lt_u32 s3, 2")
    A("s_cselect_b32 s52, s52, s53"); A("s_movk_i32 s53, 2752"); A("s_cselect_b32 s53, 0x2000, s53")
    A("s_cselect_b32 s54, 8, s47")
    A("s_mov_b32 s34, 1409024"); A("s_cselect_b32 s34, 0x400000, s34")
    A("s_lshl_b32 s55, s30, 3")
    A("v_add_u32 v1, s55, v9"); A("v_lshlrev_b32 v2, 4, v1")
    A("v_lshlrev_b32 v1, 3, v1"); A("v_mul_lo_u32 v1, v1, s53")
    A("v_cmp_gt_u32 vcc, s54, v10")
    A("v_lshl_add_u32 v1, v10, 4, v1"); A("v_add_u32 v1, s52, v1")
    A("v_mov_b32 v3, 0x40000000"); A("v_cndmask_b32 v1, v3, v1, vcc")
    A("s_mov_b32 s55, 0")
    A("s_waitcnt lgkmcnt(0)")
    stamp(1)
    A("global_load_dwordx4 v[12:15], v2, s[4:5]")
    A("s_cmp_eq_u32 s3, 2"); A("s_cselect_b64 s[32:33], s[16:17], s[18:19]")
    A("s_cmp_lt_u32 s3, 2"); A("s_cselect_b64 s[32:33], s[10:11], s[32:33]")
    A("s_and_b32 s33, s33, 0xffff")
    if o.nof == 1: A("v_mov_b32 v1, v3")
    if o.nof == 2:
        A("s_cmp_lt_u32 s3, 2"); A("s_cbranch_scc1 L_kp"); A("v_mov_b32 v1, v3"); A("L_kp:")
    if o.nof == 3:
        A("s_cmp_ge_u32 s3, 2"); A("s_cbranch_scc1 L_kp"); A("v_mov_b32 v1, v3"); A("L_kp:")
    for i in range(8):
        A(f"buffer_load_dwordx4 v[{16+4*i}:{19+4*i}], v1, s[32:35], s55 offen {o.ldf}")
        if i < 7: A("s_add_u32 s55, s55, s53")
    wssrd()
    A("s_cmp_lg_u32 s3, 3"); A("s_cbranch_scc1 L_f_nog1")
    A("v_lshlrev_b32 v2, 4, v0")
    A("global_load_dwordx4 v[84:87], v2, s[4:5]")
    A("global_load_dwordx4 v[88:91], v2, s[22:23]")
    A("L_f_nog1:")
    masks()
    spot()
    A("s_mov_b32 s44, 0x0c0c0400"); A("s_mov_b32 s45, 0x04000c0c")
    A("s_and_b32 s62, s2, 31")
    A("s_lshl_b32 s56, s62, 2"); A("s_add_u32 s56, s56, s3"); A("s_lshl_b32 s56, s56, 11"); A(f"s_add_u32 s56, s56, {H0BASE}")
    A("s_lshl_b32 s57, s30, 4"); A("s_add_u32 s57, s57, s56")
    A("v_lshrrev_b32 v1, 4, v0"); A("v_lshl_add_u32 v1, v10, 1, v1"); A("v_lshlrev_b32 v1, 7, v1")
    A("v_lshlrev_b32 v2, 4, v0")
    if o.pretouch & 1:
        A("buffer_load_dwordx4 v[92:95], v2, s[48:51], s56 offen sc1")
        A("buffer_load_dwordx4 v[92:95], v2, s[48:51], s56 offen offset:1024 sc1")
    A("s_mov_b32 s60, 0x01000100"); A("s_mov_b32 s61, 0x03020302")
    A("s_mov_b32 s59, 0")
    A(f"s_waitcnt vmcnt({10 if o.pretouch & 1 else 8})")
    for i in range(8):
        A(f"v_perm_b32 v11, v{12+i//2}, v{12+i//2}, s{60+i%2}")
        for d in range(4): A(f"v_and_b32 v{48+4*i+d}, v11, v{4+d}")
    spot()
    A("s_waitcnt lgkmcnt(0)")
    tags()
    A(f"s_waitcnt vmcnt({2 if o.pretouch & 1 else 0})")
    stamp(2)
    for i in range(8):
        A(f"v_mfma_f32_16x16x32_bf16 v[80:83], v[{48+4*i}:{51+4*i}], v[{16+4*i}:{19+4*i}], " + ("0" if i == 0 else "v[80:83]"))
    for i in range(4): A(f"v_permlane32_swap_b32 v{80+i}, v{12+i}")
    for i in range(4): A(f"v_add_f32_dpp v{80+i}, v{12+i}, v{80+i} row_ror:8 {DP}")
    tagq(80)
    A("s_mov_b64 exec, 0x00ff00ff")
    if not o.nop0: pubL("v[80:83]", "v1", "s57")
    A("s_mov_b64 exec, -1")
    stamp(3)
    spot()
    A("s_cmp_lg_u32 s3, 3"); A("s_cbranch_scc1 L_f_nog2")
    for i in range(4):
        A(f"v_lshlrev_b32 v16, 16, v{84+i}"); A(f"v_and_b32 v17, 0xffff0000, v{84+i}")
        A(f"v_lshlrev_b32 v18, 16, v{88+i}"); A(f"v_and_b32 v19, 0xffff0000, v{88+i}")
        A("v_mul_f32 v16, v16, v18"); A("v_mul_f32 v17, v17, v19")
        A("v_cvt_pk_bf16_f32 v16, v16, v17")
        A("v_lshlrev_b32 v17, 16, v16"); A("v_and_b32 v16, 0xffff0000, v16")
        if i == 0: A("v_add_f32 v20, v16, v17")
        else: A("v_add_f32 v20, v20, v16"); A("v_add_f32 v20, v20, v17")
    spot()
    red8("v_add_f32", [20])
    A(f"v_add_f32_dpp v20, v20, v20 row_ror:8 {DP}")
    A("v_add_f32_dpp v20, v20, v20 row_bcast:15 row_mask:0xa bank_mask:0xf")
    A("v_add_f32_dpp v20, v20, v20 row_bcast:31 row_mask:0xc bank_mask:0xf")
    A("v_cvt_pk_bf16_f32 v20, v20, v20"); A("v_and_b32 v20, 0xffff0000, v20")
    A("v_mul_f32 v20, 0xbfb8aa3b, v20"); A("v_exp_f32 v20, v20"); A("v_add_f32 v20, 1.0, v20"); A("v_rcp_f32 v20, v20")
    A("v_cvt_pk_bf16_f32 v20, v20, v20"); A("v_and_b32 v20, 0xffff0000, v20")
    A("v_sub_f32 v21, 1.0, v20"); A("v_cvt_pk_bf16_f32 v21, v21, v21"); A("v_and_b32 v21, 0xffff0000, v21")
    A(f"v_mov_b32 v22, {L_G}")
    A("s_bfm_b64 exec, 1, 63")
    A("ds_write_b64 v22, v[20:21]")
    A("s_mov_b64 exec, -1")
    A("L_f_nog2:")
    spot()
    if o.wait_pub == 1: A("s_waitcnt vmcnt(0)")
    stamp(4)
    A(f"s_mov_b32 s58, {o.nl}"); A(f"s_mov_b32 s93, {o.spin}"); A("s_mov_b32 s92, s40")
    A("L_p0:")
    A("s_sub_u32 s58, s58, 1"); A("s_cbranch_scc1 L_p0_to")
    A("L_p0_ld:")
    if not o.nop0:
        A("buffer_load_dwordx4 v[16:19], v2, s[48:51], s56 offen sc1")
        A("buffer_load_dwordx4 v[20:23], v2, s[48:51], s56 offen offset:1024 sc1")

    A("s_waitcnt vmcnt(0)")
    chk(16, 24); chk(20, 26)
    A("v_cmp_eq_u32 vcc, s92, v24"); A("v_cmp_eq_u32 s[60:61], s92, v26"); A("s_and_b64 vcc, vcc, s[60:61]")
    A("s_cmp_eq_u64 vcc, exec"); A("s_nop 0" if o.nopoll else "s_cbranch_scc0 L_p0")
    stamp(5)
    for r in range(16, 24): A(f"v_and_b32 v{r}, 0xffffff00, v{r}")
    spot()
    red8("v_add_f32", list(range(16, 24)))
    A("v_cvt_pk_bf16_f32 v16, v16, v17"); A("v_cvt_pk_bf16_f32 v17, v18, v19")
    A("v_cvt_pk_bf16_f32 v18, v20, v21"); A("v_cvt_pk_bf16_f32 v19, v22, v23")
    A("s_lshl_b32 s55, s3, 7"); A("v_lshl_add_u32 v1, v9, 3, s55")
    A("ds_write_b64 v1, v[16:17]"); A("ds_write_b64 v1, v[18:19] offset:64")
    A("s_lshl_b32 s55, s3, 2"); A("v_mov_b32 v1, s55"); A("v_mov_b32 v2, s59"); A(f"ds_write_b32 v1, v2 offset:{L_FL}")
    spot()
    A(f"s_mul_i32 s52, s62, {H1STR}"); A(f"s_add_u32 s52, s52, {H1BASE}"); A("s_lshl_b32 s53, s3, 10"); A("s_add_u32 s53, s53, s52")
    A("s_lshl_b32 s54, s30, 4"); A("s_add_u32 s54, s54, s53"); A("s_add_u32 s52, s52, 4096")
    A("v_lshlrev_b32 v13, 4, v10"); A("v_lshlrev_b32 v14, 7, v9"); A("v_lshlrev_b32 v12, 4, v0")
    A("s_lshl_b32 s60, s30, 14"); A("s_lshl_b32 s61, s62, 9"); A("s_add_u32 s96, s60, s61"); A(f"s_add_u32 s96, s96, {H2BASE}")
    if o.pretouch & 2:
        A("buffer_load_dwordx4 v[84:87], v12, s[48:51], s53 offen sc1")
        A("buffer_load_dwordx4 v[88:91], v13, s[48:51], s52 offen sc1")
    spot()
    A("s_mov_b32 s32, s12"); A("s_and_b32 s33, s13, 0xffff"); A("s_mov_b32 s34, 0x400000")
    A("s_mov_b32 s36, s20"); A("s_and_b32 s37, s21, 0xffff"); A("s_mov_b32 s38, 1409024")
    A("s_lshl_b32 s55, s31, 17"); A("s_lshl_b32 s56, s3, 15"); A("s_add_u32 s55, s55, s56"); A("s_lshl_b32 s56, s30, 7"); A("s_add_u32 s55, s55, s56")
    A("v_lshlrev_b32 v2, 4, v10"); A("v_lshl_add_u32 v1, v9, 12, v2")
    A("v_lshl_add_u32 v2, v9, 10, v2")
    A("s_add_u32 s57, s46, s3"); A("s_lshl_b32 s57, s57, 13"); A("s_add_u32 s56, s56, s57")
    A("s_add_u32 s57, s3, 4"); A("s_cmp_lt_u32 s57, s47"); A("s_mov_b32 s57, 0x40000000"); A("s_cselect_b32 s57, 0x8000, s57"); A("v_add_u32 v11, s57, v2")
    def late():
        A(f"buffer_load_dwordx4 v[16:19], v2, s[36:39], s56 offen {ld}")
        A(f"buffer_load_dwordx4 v[20:23], v11, s[36:39], s56 offen {ld}")
        for i in range(4): A(f"buffer_load_dwordx4 v[{24+4*i}:{27+4*i}], v1, s[32:35], s55 offen offset:{1024*i} {ld}")
    A("s_waitcnt lgkmcnt(0)")
    if o.late == "b0": late()
    spot()
    A("s_barrier")
    stamp(6)
    A("s_lshl_b32 s57, s3, 4"); A("v_lshl_add_u32 v3, v9, 1, s57")
    A("ds_read_u16 v40, v3 offset:256"); A("ds_read_u16 v41, v3 offset:384")
    A("ds_read_u16 v42, v3 offset:320"); A("ds_read_u16 v43, v3 offset:448")
    A(f"v_mov_b32 v3, {L_G}"); A("ds_read_b64 v[44:45], v3")
    if o.late == "b1": late()
    A("s_barrier")
    if o.late == "b2": late()
    stamp(7)
    spot()
    A("s_waitcnt lgkmcnt(0)")
    for t in range(2):
        A(f"v_lshlrev_b32 v{40+2*t}, 16, v{40+2*t}"); A(f"v_lshlrev_b32 v{41+2*t}, 16, v{41+2*t}")
        A(f"v_max_f32 v{40+2*t}, 0, v{40+2*t}"); A(f"v_mul_f32 v{40+2*t}, v{40+2*t}, v{41+2*t}")
        A(f"v_cvt_pk_bf16_f32 v{40+2*t}, v{40+2*t}, v{40+2*t}")
        for d in range(4): A(f"v_and_b32 v{48+4*t+d}, v{40+2*t}, v{4+d}")
    A(f"v_mul_u32_u24 v46, {PSTR}, v10"); A("v_lshl_add_u32 v46, v9, 4, v46"); A("s_lshl_b32 s57, s3, 7"); A("v_add_u32 v46, s57, v46")
    A("v_bfe_u32 v3, v0, 4, 1"); A("v_lshl_add_u32 v3, v10, 1, v3"); A("v_lshlrev_b32 v3, 4, v3")
    A("v_lshrrev_b32 v47, 5, v0"); A("v_lshl_add_u32 v3, v47, 8, v3"); A("s_lshl_b32 s57, s3, 9"); A("v_add_u32 v3, s57, v3")
    A("v_lshlrev_b32 v47, 3, v0")
    A(f"s_cmp_eq_u32 s59, 0"); A(f"s_cselect_b32 s58, {o.nl}, 0"); A("s_mov_b32 s59, 0"); A("s_mov_b32 s92, s40")
    spot()
    A("s_barrier")
    A(f"ds_read_b128 v[64:67], v46 offset:{L_PART}")
    if o.late == "b3": late()
    stamp(8)
    A("s_waitcnt lgkmcnt(0)")
    red8("v_add_f32", [64, 65, 66, 67])
    tagq(64)
    A("s_mov_b32 exec_lo, 0x01010101"); A("s_mov_b32 exec_hi, 0x01010101")
    pubL("v[64:67]", "v14", "s54")
    A("s_mov_b64 exec, -1")
    stamp(11)
    nst = 1
    A("buffer_load_dwordx4 v[68:71], v12, s[48:51], s53 offen sc1")
    A("buffer_load_dwordx4 v[72:75], v13, s[48:51], s52 offen sc1")
    A(f"s_waitcnt vmcnt({4+nst+2})")
    A("v_mfma_f32_16x16x32_bf16 v[80:83], v[48:51], v[16:19], 0")
    A("v_mfma_f32_16x16x32_bf16 v[80:83], v[52:55], v[20:23], v[80:83]")
    for i in range(4): A(f"v_mul_f32 v{80+i}, v45, v{80+i}")
    A("s_branch L_p1_c")
    spot()
    A("L_p1:")
    A("s_sub_u32 s58, s58, 1"); A("s_cbranch_scc1 L_p1_to")
    A("L_p1_ld:")
    A("buffer_load_dwordx4 v[68:71], v12, s[48:51], s53 offen sc1")
    A("buffer_load_dwordx4 v[72:75], v13, s[48:51], s52 offen sc1")
    A("L_p1_c:")
    A("s_waitcnt vmcnt(0)")
    chk(68, 40); chk(72, 42)
    A("v_cmp_eq_u32 vcc, s92, v40"); A("v_cmp_eq_u32 s[60:61], s92, v42"); A("s_and_b64 vcc, vcc, s[60:61]")
    A("s_cmp_eq_u64 vcc, exec"); A("s_nop 0" if o.nopoll else "s_cbranch_scc0 L_p1")
    stamp(9)
    A("v_and_b32 v73, 0xffff0000, v73")
    A("v_and_b32 v72, 0xffffff00, v72"); A("v_and_b32 v68, 0xffffff00, v68")
    A(f"v_max_f32_dpp v74, v73, v73 quad_perm:[1,0,3,2] {DP}")
    A("v_and_b32 v69, 0xffffff00, v69"); A("v_and_b32 v70, 0xffffff00, v70")
    A(f"v_max_f32_dpp v74, v74, v74 quad_perm:[2,3,0,1] {DP}")
    A("v_and_b32 v71, 0xffffff00, v71")
    A(f"v_max_f32_dpp v74, v74, v74 row_half_mirror {DP}")
    A("v_sub_f32 v73, v73, v74"); A("v_mul_f32 v73, 0x3fb8aa3b, v73"); A("v_exp_f32 v73, v73")
    for r in (72, 68, 69, 70, 71): A(f"v_mul_f32 v{r}, v73, v{r}")
    red8("v_add_f32", [72, 68, 69, 70, 71])
    spot()
    A("v_rcp_f32 v72, v72"); A("v_mul_f32 v72, v44, v72")
    for i in range(4): A(f"v_mul_f32 v{68+i}, v72, v{68+i}")
    for i in range(4): A(f"v_cvt_pk_bf16_f32 v{68+i}, v{68+i}, v{68+i}")
    for i in range(4):
        for d in range(4): A(f"v_and_b32 v{48+4*i+d}, v{68+i}, v{4+d}")
        if i: A(f"v_mfma_f32_16x16x32_bf16 v[80:83], v[{44+4*i}:{47+4*i}], v[{20+4*i}:{23+4*i}], v[80:83]")
    A("v_mfma_f32_16x16x32_bf16 v[80:83], v[60:63], v[36:39], v[80:83]")
    A("s_mov_b32 exec_lo, 0x00ff00ff"); A("s_mov_b32 exec_hi, 0xff00ff00")
    A("s_not_b32 s95, s94")
    spot()
    A(f"ds_write_b128 v3, v[80:83] offset:{L_Y}")
    A("s_mov_b32 exec_lo, -1"); A("s_mov_b32 exec_hi, 0")
    A("v_lshlrev_b32 v1, 4, v0")
    A("v_mov_b32 v34, s94"); A("v_mov_b32 v35, s95")
    A("s_cmp_lg_u32 s3, 0")
    A("s_waitcnt lgkmcnt(0)")
    A("s_barrier")
    A("s_cbranch_scc1 L_end")
    for k in range(8): A(f"ds_read_b64 v[{16+2*k}:{17+2*k}], v47 offset:{L_Y+256*k}")
    A("s_waitcnt lgkmcnt(0)")
    for k in range(4): A(f"v_pk_add_f32 v[{16+4*k}:{17+4*k}], v[{16+4*k}:{17+4*k}], v[{18+4*k}:{19+4*k}]")
    A("v_pk_add_f32 v[16:17], v[16:17], v[20:21]"); A("v_pk_add_f32 v[24:25], v[24:25], v[28:29]")
    A("v_pk_add_f32 v[32:33], v[16:17], v[24:25]")
    A(f"buffer_store_dwordx4 v[32:35], v1, s[48:51], s96 offen sc1")
    stamp(10)
    dump(0, 12, "f")
    A("s_endpgm")
    timeout("p0", "0x00ff00ff", "0", 80, "v1", "s57", ["s56"])
    timeout("p1", "0x01010101", "0x01010101", 64, "v14", "s54", ["s52", "s53"])

    spot()
    A("L_kv:")
    masks()
    wssrd()
    for n in range(nfirst, 16):
        d = o.depth0 if n < o.dsw else o.depth
        if d and n < o.dend: A(f"s_waitcnt vmcnt({d-1})")
        kvload(n)
        if n == 7: stamp(8)
    A("v_and_b32 v2, 15, v0"); A("v_lshlrev_b32 v3, 4, v2")
    A("v_lshrrev_b32 v9, 4, v0")
    A("s_lshl_b32 s55, s3, 4"); A("v_lshl_add_u32 v11, v9, 2, s55")
    stamp(2)
    spot()
    A("s_barrier")
    A("ds_read_b128 v[12:15], v3")
    A("s_waitcnt vmcnt(8) lgkmcnt(0)")
    stamp(3)
    for d in range(4):
        for i in range(8):
            A(f"v_dot2_f32_bf16 v{16+i}, v{32+4*i+d}, v{12+d}, " + ("0" if d == 0 else f"v{16+i}"))
    spot()
    for k in range(4): A(f"v_add_f32_dpp v{16+k}, v{16+k}, v{16+k} row_ror:8 row_mask:0xf bank_mask:0x3")
    for k in range(4): A(f"v_add_f32_dpp v{16+k}, v{20+k}, v{20+k} row_ror:8 row_mask:0xf bank_mask:0xc")
    for k in range(2): A(f"v_add_f32_dpp v{16+k}, v{16+k}, v{16+k} row_half_mirror row_mask:0xf bank_mask:0x5")
    for k in range(2): A(f"v_add_f32_dpp v{16+k}, v{18+k}, v{18+k} row_half_mirror row_mask:0xf bank_mask:0xa")
    for pat in ("quad_perm:[1,0,3,2]", "quad_perm:[2,3,0,1]"):
        for k in range(2): A(f"v_add_f32_dpp v{16+k}, v{16+k}, v{16+k} {pat} {DP}")
    A("v_cvt_pk_bf16_f32 v17, v16, v17")
    A("v_lshlrev_b32 v16, 16, v17"); A("v_and_b32 v17, 0xffff0000, v17")
    A("v_mul_f32 v16, 0x3db504f3, v16"); A("v_mul_f32 v17, 0x3db504f3, v17")
    A("v_cvt_pk_bf16_f32 v17, v16, v17")
    A("v_lshlrev_b32 v16, 16, v17"); A("v_and_b32 v17, 0xffff0000, v17")
    A("v_max_f32 v20, v16, v17")
    A(f"v_max_f32_dpp v20, v20, v20 row_ror:4 {DP}"); A(f"v_max_f32_dpp v20, v20, v20 row_ror:8 {DP}")
    A(f"ds_write_b32 v11, v20 offset:{L_MX}")
    A("v_lshlrev_b32 v11, 3, v2")
    tags()
    spot()
    A("s_waitcnt lgkmcnt(0)")
    A("s_barrier")
    A(f"ds_read_b64 v[20:21], v11 offset:{L_MX}")
    A(f"s_mul_i32 s55, s3, {PSTR}")
    A("v_lshl_add_u32 v3, v2, 1, v9"); A("v_lshl_add_u32 v3, v3, 4, s55")
    A("s_lshl_b32 s55, s3, 3"); A("v_mov_b32 v2, s55")
    A("s_waitcnt lgkmcnt(0)")
    stamp(4)
    A("v_max_f32 v20, v20, v21")
    for pat in ("quad_perm:[1,0,3,2]", "quad_perm:[2,3,0,1]", "row_ror:4", "row_ror:8"):
        A(f"v_max_f32_dpp v20, v20, v20 {pat} {DP}")
    for k in range(2): A(f"v_sub_f32 v{16+k}, v{16+k}, v20")
    for k in range(2): A(f"v_mul_f32 v{16+k}, 0x3fb8aa3b, v{16+k}")
    for k in range(2): A(f"v_exp_f32 v{16+k}, v{16+k}")
    A("v_mul_f32 v25, 0x3e000000, v20")
    A("v_add_f32 v24, v16, v17")
    for k in range(2): A(f"v_cvt_pk_bf16_f32 v{16+k}, v{16+k}, v{16+k}")
    extra = [f"v_add_f32_dpp v24, v24, v24 row_ror:4 {DP}", f"v_add_f32_dpp v24, v24, v24 row_ror:8 {DP}",
             "v_add_f32_dpp v24, v24, v24 row_bcast:15 row_mask:0xa bank_mask:0xf", "v_add_f32_dpp v24, v24, v24 row_bcast:31 row_mask:0xc bank_mask:0xf"]
    spot()
    for i in range(8):
        if i < 4: A(extra[i])
        for d in range(4): A(f"v_and_b32_dpp v{32+4*i+d}, v{16+i%2}, v{4+d} row_newbcast:{4*(i//2)} {DP}")
    A("s_bfm_b64 exec, 1, 63")
    A(f"ds_write_b64 v2, v[24:25] offset:{L_LM}")
    A("s_mov_b64 exec, -1")
    A("s_and_b32 s62, s2, 31"); A(f"s_mul_i32 s55, s62, {H1STR}"); A("s_lshl_b32 s56, s30, 4"); A("s_add_u32 s55, s55, s56"); A(f"s_add_u32 s55, s55, {H1BASE+4096}")
    A("v_lshlrev_b32 v1, 4, v0"); A("v_lshlrev_b32 v2, 3, v0")
    spot()
    stamp(5)
    for i in range(8):
        A(f"s_waitcnt vmcnt({7-i})")
        A(f"v_mfma_f32_16x16x32_bf16 v[28:31], v[{32+4*i}:{35+4*i}], v[{64+4*i}:{67+4*i}], " + ("0" if i == 0 else "v[28:31]"))
    stamp(6)
    A("s_mov_b32 exec_hi, 0")
    A("s_cmp_lg_u32 s3, 0")
    A(f"ds_write_b128 v3, v[28:31] offset:{L_PART}")
    A("s_waitcnt lgkmcnt(0)")
    A("s_barrier")
    A("s_cbranch_scc1 L_kv_n0")
    A("s_mov_b32 exec_lo, 0xff")
    A(f"ds_read_b64 v[32:33], v2 offset:{L_LM}")
    A("v_mov_b32 v34, 0"); A("v_mov_b32 v35, 0")
    A(f"ds_read_b32 v36, v34 offset:{L_FL}")
    A("s_waitcnt lgkmcnt(0)")
    red8("v_add_f32", [32, 33])
    tagq(32)
    A("s_mov_b32 exec_lo, 1")
    pubL("v[32:35]", "v1", "s55")
    stamp(7)
    A("v_readfirstlane_b32 s59, v36"); A("s_cmp_eq_u32 s59, 0"); A("s_cbranch_scc1 L_kv_nog")
    pubG(32, "v1", "s55")
    A("L_kv_nog:")
    A("s_barrier")
    dump(16, 9, "kv")
    A("s_endpgm")
    A("L_kv_n0:")
    A("s_cmp_lg_u32 s3, 1"); A("s_cbranch_scc1 L_end")
    A("s_and_b32 s60, s2, 7"); A("s_lshr_b32 s61, s2, 3")
    A("s_lshl_b32 s97, s60, 14"); A("s_lshl_b32 s98, s61, 4"); A("s_add_u32 s97, s97, s98"); A(f"s_add_u32 s97, s97, {H2BASE}")
    A("s_lshl_b32 s60, s60, 7"); A("s_lshl_b32 s61, s61, 2"); A("s_add_u32 s98, s60, s61")
    A("v_lshlrev_b32 v15, 9, v0")
    if o.pretouch & 4: A("buffer_load_dwordx4 v[16:19], v15, s[48:51], s97 offen sc1")
    A("s_not_b32 s95, s94"); A("v_mov_b32 v34, s94")
    A(f"s_mov_b32 s58, {o.spin}")
    A("s_barrier")
    stamp(9)
    spot()
    A("L_p2:")
    A("buffer_load_dwordx4 v[16:19], v15, s[48:51], s97 offen sc1")
    A("s_sub_u32 s58, s58, 1"); A("s_cbranch_scc1 L_end")
    A("s_waitcnt vmcnt(0)")
    A("v_cmp_eq_u64 vcc, s[94:95], v[18:19]")
    A("s_cmp_eq_u64 vcc, exec"); A("s_nop 0" if o.nopoll else "s_cbranch_scc0 L_p2")
    stamp(10)
    red8("v_add_f32", [16, 17])
    for r in (16, 17): A(f"v_add_f32_dpp v{r}, v{r}, v{r} row_ror:8 {DP}")
    A("v_mov_b32 v1, s98")
    for r in (16, 17): A(f"v_add_f32_dpp v{r}, v{r}, v{r} row_bcast:15 row_mask:0xa bank_mask:0xf")
    A("v_cvt_pk_bf16_f32 v16, v16, v17")
    A("s_mov_b32 exec_lo, 0x80000000")
    A("global_store_dword v1, v16, s[24:25]")
    A("s_cmp_lg_u32 s2, 0"); A("s_cbranch_scc1 L_c_fin")
    A("v_mov_b32 v1, 0")
    A("global_store_dword v1, v34, s[28:29]")
    A("L_c_fin:")
    stamp(11)
    if o.stamps and not o.probe:
        for k in (9, 10, 11): A("s_waitcnt lgkmcnt(0)"); A(f"s_mov_b64 s[{64+2*(k-9)}:{65+2*(k-9)}], s[{64+2*k}:{65+2*k}]")
    dump(26, 3, "c")
    A("L_end:")
    A("s_endpgm")

    txt = HEADER + f"; @launch grid=(256,1,1) block=(768,1,1) lds={LDS_BYTES}\n"
    txt += '.amdgcn_target "amdgcn-amd-amdhsa--gfx950"\n.text\n'
    if o.align: txt += ".p2align 12\n"
    txt += f".globl {KN}\n.p2align 8\n.type {KN},@function\n{KN}:\n"
    txt += finalize(L)
    txt += f""".section .rodata,"a"
.p2align 6
.amdhsa_kernel {KN}
  .amdhsa_next_free_vgpr 96
  .amdhsa_next_free_sgpr 100
  .amdhsa_accum_offset 96
  .amdhsa_group_segment_fixed_size 0
  .amdhsa_kernarg_size 104
  .amdhsa_user_sgpr_count 2
  .amdhsa_user_sgpr_kernarg_segment_ptr 1
  .amdhsa_system_sgpr_workgroup_id_x 1
  .amdhsa_float_denorm_mode_32 3
.end_amdhsa_kernel
"""
    return txt

def syms(co):
    out = subprocess.run(["llvm-readelf", "-s", co], capture_output=True, text=True).stdout
    d = {}
    for l in out.splitlines():
        p = l.split()
        if len(p) >= 8 and re.fullmatch("[0-9a-f]{16}", p[1]): d[p[7]] = int(p[1], 16)
    return d

def choose_pads(d, reach=1024):
    sp = sorted((a, int(k[2:])) for k, a in d.items() if re.fullmatch(r"SP\d+", k))
    end = d["L_end"] + 4
    def cover(a): return min((a & ~63) + reach, (a | 4095) + 1)
    c = cover(d[KN]); pads = []
    while c < end:
        cand = [(a, k) for a, k in sp if a <= c + 63 and cover(a) > c]
        if cand: a, k = max(cand)
        else:
            nxt = [(a, k) for a, k in sp if a > c]
            if not nxt: break
            a, k = min(nxt)
        pads.append(k); c = cover(a)
    return pads

def parse(argv):
    p = argparse.ArgumentParser()
    p.add_argument("out")
    p.add_argument("--ld", default="nt"); p.add_argument("--stamps", type=int, default=0)
    p.add_argument("--hmap", default="lo"); p.add_argument("--probe", default=""); p.add_argument("--nopoll", type=int, default=0)
    p.add_argument("--scramble", type=int, default=0); p.add_argument("--nop0", type=int, default=0); p.add_argument("--nof", type=int, default=0); p.add_argument("--ldf", default="nt")
    p.add_argument("--depth", type=int, default=4); p.add_argument("--dend", type=int, default=16)
    p.add_argument("--depth0", type=int, default=4); p.add_argument("--dsw", type=int, default=0)
    p.add_argument("--late", default="b2"); p.add_argument("--local", type=int, default=1); p.add_argument("--nl", type=int, default=300)
    p.add_argument("--wait_pub", type=int, default=0); p.add_argument("--spin", type=int, default=200000)
    p.add_argument("--pretouch", type=int, default=7); p.add_argument("--align", type=int, default=1); p.add_argument("--warm", type=int, default=1)
    o = p.parse_args(argv)
    if o.ld == "none": o.ld = ""
    if o.ldf == "none": o.ldf = ""
    return o
if __name__ == "__main__":
    import build
    o = parse(sys.argv[1:])
    pads = None
    if o.warm:
        pads = list(range(7))
        for _ in range(3):
            open(o.out, "w").write(gen(o, pads)); build.build(o.out)
            d = syms(o.out[:-2] + ".co"); pads = choose_pads(d)
        assert len(pads) <= 8, pads
    open(o.out, "w").write(gen(o, pads))
    print(build.build(o.out))
    d = syms(o.out[:-2] + ".co")
    print("entry %x end %x pads %s" % (d[KN], d["L_end"], [hex(d[f"SP{k}"]) for k in pads or []]), file=sys.stderr)
```

```python
import sys, argparse, subprocess, re
from asmlib import finalize
from gen2 import syms, choose_pads
KN = "gated_mix__sliding_block_cached__glu_gated_reglu__decode_kernel"
HEADER = open("gated_mix__sliding_block_cached__glu_gated_reglu__decode.s.ref").read().split("; Override launch")[0]

H0BASE = 4096
H1BASE = H0BASE + 32*4*8*256
H1STR = 33*128
GOFF = 0x80000
H2BASE = 2*GOFF
WSUSE = H2BASE + 256*512
L_Q = 0; L_G = 512; L_CNT = 520; L_LM = 528; L_PART = 768; PSTR = 576; L_Y = L_PART + 8*PSTR
LDS_BYTES = L_Y + 8*256
C_Q, C_X, C_G, C_M, C_DONE = 1, 16, 256, 4096, 65536
DP = "row_mask:0xf bank_mask:0xf"

def gen(o, pads=None):
    L = []
    A = L.append
    ld = o.ld
    spots = [0]
    inkv = [False]
    def spot(): pass
    def stamp(k):
        if o.probe and (k not in (0, int(o.probe.split(":")[2])) or (k and inkv[0])): return
        if o.stamps: A(f"s_memrealtime s[{64+2*k}:{65+2*k}]")
    def dump(base, n, lbl):
        if o.probe:
            role, k0, k1, amp, basec, wg = o.probe.split(":")
            if role != lbl: return
            k0, k1, amp, basec, wg = int(k0), int(k1), int(amp), int(basec), int(wg)
            A("s_waitcnt lgkmcnt(0)")
            if wg >= 0:
                A(f"s_cmp_lg_u32 s2, {wg}"); A("s_cbranch_scc1 L_end")
            A(f"s_sub_u32 s60, s{64+2*k1}, s{64+2*k0}"); A(f"s_mul_i32 s60, s60, {amp}"); A(f"s_add_u32 s60, s60, {basec}")
            A("s_min_u32 s60, s60, 100000")
            A(f"L_spin_{lbl}:")
            A("s_memrealtime s[62:63]"); A("s_waitcnt lgkmcnt(0)"); A("s_sub_u32 s62, s62, s64"); A("s_cmp_lt_u32 s62, s60"); A(f"s_cbranch_scc1 L_spin_{lbl}")
            return
        if not o.stamps: return
        A("s_waitcnt lgkmcnt(0)")
        A("s_mov_b64 exec, 1")
        A("s_lshl_b32 s60, s2, 8"); A("s_add_u32 s62, s28, s60"); A("s_addc_u32 s63, s29, 0")
        A("s_add_u32 s62, s62, 0x8000000"); A("s_addc_u32 s63, s63, 0")
        A("v_mov_b32 v3, 0")
        for k in range(n):
            A(f"v_mov_b32 v4, s{64+2*k}"); A(f"v_mov_b32 v5, s{65+2*k}")
            A(f"global_store_dwordx2 v3, v[4:5], s[62:63] offset:{8*(base+k)}")
            A("s_nop 1")
    def tagq(r):
        for i in range(4): A(f"v_bfi_b32 v{r+i}, v8, s{40+i}, v{r+i}")
    def chk(r, t):
        A(f"v_perm_b32 v{t}, v{r+1}, v{r}, s44")
        A(f"v_perm_b32 v{t+1}, v{r+3}, v{r+2}, s45")
        A(f"v_or_b32 v{t}, v{t}, v{t+1}")
    def red8(op, rs):
        for pat in ("quad_perm:[1,0,3,2]", "quad_perm:[2,3,0,1]", "row_half_mirror"):
            for r in rs: A(f"{op}_dpp v{r}, v{r}, v{r} {pat} {DP}")
    def masks():
        A("v_and_b32 v2, 1, v0"); A("v_lshlrev_b32 v2, 4, v2"); A("v_mov_b32 v3, 0xffff"); A("v_lshlrev_b32 v2, v2, v3")
        A("v_bfe_u32 v3, v0, 1, 2")
        for d in range(4):
            A(f"v_cmp_eq_u32 vcc, {d}, v3"); A(f"v_cndmask_b32 v{4+d}, 0, v2, vcc")
    def wssrd():
        A("s_load_dword s40, s[28:29], 0")
        A("s_mov_b32 s48, s28"); A("s_and_b32 s49, s29, 0xffff"); A(f"s_mov_b32 s50, {WSUSE}"); A("s_mov_b32 s51, 0x20000")
    def pubL(regs, va, so):
        if o.nohand: return
        A(f"buffer_store_dwordx4 {regs}, {va}, s[48:51], {so} offen {o.stl}")
    def pubG(r, va, so):
        A("s_lshr_b32 s60, s94, 24"); A(f"v_bfi_b32 v{r+3}, v8, s60, v{r+3}"); A(f"s_add_u32 s60, {so}, {GOFF}")
        A(f"buffer_store_dwordx4 v[{r}:{r+3}], {va}, s[48:51], s60 offen sc1")
    def cnt_add(vz, vt, val):
        A(f"v_mov_b32 {vt}, {val}"); A("s_mov_b64 exec, 1"); A(f"ds_add_u32 {vz}, {vt} offset:{L_CNT}"); A("s_mov_b64 exec, -1")
    def cnt_wait(name, vz, vt, shift, need, extra=None):
        if o.csleep and name != "wr":
            A(f"s_branch L_{name}_1"); A(f"L_{name}:"); A(f"s_sleep {o.csleep}"); A(f"L_{name}_1:")
        else: A(f"L_{name}:")
        A(f"ds_read_b32 {vt}, {vz} offset:{L_CNT}")
        if extra: extra()
        A("s_sub_u32 s93, s93, 1"); A("s_cbranch_scc1 L_end")
        A("s_waitcnt lgkmcnt(0)")
        A(f"v_readfirstlane_b32 s60, {vt}"); A(f"s_bfe_u32 s60, s60, {(4 << 16) | shift:#x}"); A(f"s_cmp_ge_u32 s60, {need}")
        A(f"s_cbranch_scc0 L_{name}")

    stamp(0)
    A("s_load_dwordx16 s[4:19], s[0:1], 0")
    A("s_load_dwordx8 s[20:27], s[0:1], 64")
    A("s_load_dwordx2 s[28:29], s[0:1], 96")
    A("s_cmp_ge_u32 s2, 256"); A("s_cbranch_scc1 L_end")
    if o.scramble:
        A("s_lshr_b32 s3, s2, 5"); A("s_and_b32 s3, s3, %d" % o.scramble); A("s_xor_b32 s2, s2, s3")
    A("v_lshrrev_b32 v1, 6, v0")
    A("v_and_b32 v0, 63, v0")
    A("v_readfirstlane_b32 s3, v1")
    A("s_lshr_b32 s30, s2, 5")
    if o.sxor: A(f"s_xor_b32 s30, s30, {o.sxor}")
    A("s_and_b32 s63, s2, 7"); A("s_lshl_b32 s63, s63, 2"); A("s_bfe_u32 s32, s2, 0x20003"); A("s_add_u32 s63, s63, s32")
    if o.hmap == "lo": A("s_and_b32 s31, s2, 31")
    else: A("s_mov_b32 s31, s63")
    A("s_mov_b32 s35, 0x20000"); A("s_mov_b32 s39, 0x20000")
    A(f"s_mov_b32 s93, {o.spin}")
    A("s_cmp_lt_u32 s3, 4"); A("s_cbranch_scc1 L_f")
    A("v_mov_b32 v8, 0"); A(f"ds_write_b32 v8, v8 offset:{L_CNT}")
    A("s_sub_u32 s3, s3, 4")
    if o.pat == "wis":
        A("s_lshl_b32 s52, s30, 16"); A("s_lshl_b32 s53, s31, 21"); A("s_add_u32 s52, s52, s53"); A("s_add_u32 s52, s52, 0x180000")
        A("v_lshl_add_u32 v1, v0, 4, s52")
        A("s_lshl_b32 s54, s30, 1"); A("s_add_u32 s54, s54, s31"); A("s_lshl_b32 s54, s54, 2"); A("s_add_u32 s54, s54, s3"); A("s_lshl_b32 s54, s54, 10")
        A("s_mov_b32 s55, 0xffff"); A("s_movk_i32 s56, 0x2000")
        A("s_and_b32 s54, s54, s55")
        if o.order != "K"*8 + "V"*8: A("s_mov_b32 s53, s54")
    else:
        A("s_lshl_b32 s52, s31, 21"); A("s_add_u32 s52, s52, 0x180000")
        A("v_lshl_add_u32 v1, v0, 4, s52")
        A("s_lshl_b32 s53, s30, 3"); A("s_add_u32 s53, s53, s3"); A("s_lshl_b32 s53, s53, 10")
        A("s_mov_b32 s55, 0xffff"); A(f"s_movk_i32 s56, {o.pstep}")
        if o.hrot: A("s_and_b32 s58, s31, 7"); A("s_lshl_b32 s58, s58, 16")
        else: A("s_mov_b32 s58, 0")
        A("s_add_u32 s54, s53, s58"); A("s_mov_b32 s59, s53")
    A("s_mov_b32 s34, 0x4000000"); A("s_mov_b32 s38, 0x4000000")
    A("s_waitcnt lgkmcnt(0)")
    stamp(1)
    A("s_mov_b32 s32, s6"); A("s_and_b32 s33, s7, s55"); A("s_mov_b32 s36, s8"); A("s_and_b32 s37, s9, s55")
    depths = [c if c in "hi" else int(c, 16) for c in o.depths]
    def kvload(n):
        m = "KV".index(o.order[n]); i = o.order[:n].count(o.order[n])
        r = 32 + 32*m + 4*i
        so = "s54" if (m == 0 or o.order == "K"*8 + "V"*8) else "s53"
        if depths[n] in ("h", "i"):
            lo = 2 if depths[n] == "h" else 3
            A(f"s_waitcnt vmcnt({lo})"); A("s_bitcmp1_b32 s3, 2"); A(f"s_cbranch_scc0 L_d{n}"); A(f"s_waitcnt vmcnt({lo-1})"); A(f"L_d{n}:")
        elif depths[n] and n >= depths[n]: A(f"s_waitcnt vmcnt({depths[n]-1})")
        A(f"buffer_load_dwordx4 v[{r}:{r+3}], v1, s[{32+4*m}:{35+4*m}], {so} offen {'nt' if o.pol[n] == 'n' else ''}")
        if n < 15 and o.pat == "wis":
            A(f"s_add_u32 {so}, {so}, s56"); A(f"s_and_b32 {so}, {so}, s55")
        elif n < 15:
            if n == 7: A("s_mov_b32 s53, s59")
            else: A("s_add_u32 s53, s53, s56"); A("s_and_b32 s53, s53, s55")
            if o.hrot:
                A("s_add_u32 s58, s58, 0x10000"); A("s_and_b32 s58, s58, 0x7ffff"); A("s_add_u32 s54, s53, s58")
            else: A(f"s_add_u32 s54, s53, {((n+1) % 8) << 16:#x}")
        if n == 7: stamp(8)
    for n in range(o.n0): kvload(n)
    A("s_barrier")
    for n in range(o.n0, o.n1): kvload(n)
    if o.warm:
        A("s_mov_b64 exec, 0")
        for w in range(NPAD):
            A(f"s_cmp_eq_u32 s3, {w}"); A(f"s_cbranch_scc1 PAD{w}")
        A("L_back:")
        A("s_mov_b64 exec, -1")
    A("s_branch L_kv")

    A("L_f:")
    A("v_lshrrev_b32 v9, 3, v0"); A("v_and_b32 v10, 7, v0")
    A("s_min_u32 s46, s63, 12"); A("s_mul_i32 s47, s63, 5"); A("s_add_u32 s46, s46, s47")
    A("s_cmp_lt_u32 s63, 12"); A("s_cselect_b32 s47, 6, 5")
    A("s_lshl_b32 s52, s31, 8"); A("s_lshl_b32 s53, s3, 7"); A("s_add_u32 s52, s52, s53")
    A("s_lshl_b32 s53, s46, 4")
    A("s_cmp_lt_u32 s3, 2")
    A("s_cselect_b32 s52, s52, s53"); A("s_movk_i32 s53, 2752"); A("s_cselect_b32 s53, 0x2000, s53")
    A("s_cselect_b32 s54, 8, s47")
    A("s_mov_b32 s34, 1409024"); A("s_cselect_b32 s34, 0x400000, s34")
    A("s_lshl_b32 s55, s30, 3")
    A("v_add_u32 v1, s55, v9"); A("v_lshlrev_b32 v2, 4, v1")
    A("v_lshlrev_b32 v1, 3, v1"); A("v_mul_lo_u32 v1, v1, s53")
    A("v_cmp_gt_u32 vcc, s54, v10")
    A("v_lshl_add_u32 v1, v10, 4, v1"); A("v_add_u32 v1, s52, v1")
    A("v_mov_b32 v3, 0x40000000"); A("v_cndmask_b32 v1, v3, v1, vcc")
    A("s_mov_b32 s55, 0")
    A("s_waitcnt lgkmcnt(0)")
    stamp(1)
    if o.nox: A("buffer_load_dwordx4 v[12:15], v3, s[32:35], 0 offen") if False else A("s_nop 0")
    else: A("global_load_dwordx4 v[12:15], v2, s[4:5]")
    A("s_cmp_eq_u32 s3, 2"); A("s_cselect_b64 s[32:33], s[16:17], s[18:19]")
    A("s_cmp_lt_u32 s3, 2"); A("s_cselect_b64 s[32:33], s[10:11], s[32:33]")
    if o.gulate:
        A("s_cbranch_scc1 L_f_q0"); A("s_barrier"); A("L_f_q0:")
    A("s_and_b32 s33, s33, 0xffff")
    if o.nof == 1: A("v_mov_b32 v1, v3")
    if o.nof == 2:
        A("s_cmp_lt_u32 s3, 2"); A("s_cbranch_scc1 L_kp"); A("v_mov_b32 v1, v3"); A("L_kp:")
    if o.nof == 3:
        A("s_cmp_ge_u32 s3, 2"); A("s_cbranch_scc1 L_kp"); A("v_mov_b32 v1, v3"); A("L_kp:")
    if o.nof == 4:
        A("s_lshl_b32 s60, s2, 1"); A("s_and_b32 s61, s3, 1"); A("s_add_u32 s60, s60, s61"); A("s_cmp_lt_u32 s3, 2"); A("s_cselect_b32 s60, s60, s2"); A("s_movk_i32 s61, 5504"); A("s_cselect_b32 s61, 0x2000, s61")
        A("s_mul_i32 s60, s60, s61"); A("v_lshl_add_u32 v1, v0, 4, s60"); A("s_movk_i32 s53, 688"); A("s_cselect_b32 s53, 0x400, s53")
        A("s_cselect_b32 s61, 64, 43"); A("v_cmp_gt_u32 vcc, s61, v0"); A("v_cndmask_b32 v1, v3, v1, vcc")
    def fload(i):
        A(f"buffer_load_dwordx4 v[{16+4*i}:{19+4*i}], v1, s[32:35], s55 offen {o.ldf}")
        if i < 7: A("s_add_u32 s55, s55, s53")
    if o.gu:
        (ga, gb), (ua, ub) = [tuple(map(int, t.split(","))) for t in o.gu.split("/")]
        A("s_cmp_lt_u32 s3, 2"); A("s_cbranch_scc0 L_f_gu")
        for i in range(8): fload(i)
        A("s_barrier")
        A("s_branch L_f_ld")
        A("L_f_gu:")
        if (ga, gb) != (ua, ub):
            A("s_cmp_eq_u32 s3, 2"); A("s_cbranch_scc0 L_f_up")
        for nm, a, b in (("g", ga, gb), ("u", ua, ub)):
            if nm == "u":
                if (ga, gb) == (ua, ub): break
                A("s_branch L_f_ld"); A("L_f_up:")
            for i in range(a): fload(i)
            A("s_barrier")
            for i in range(a, 8):
                if i == a and a < b: A("s_waitcnt vmcnt(%d)" % a)
                elif i >= b: A(f"s_waitcnt vmcnt({b-1})")
                fload(i)
        A("L_f_ld:")
    else:
        for i in range(8): fload(i)
        if o.gulate:
            A("s_cmp_lt_u32 s3, 2"); A("s_cbranch_scc0 L_f_q1"); A("s_barrier"); A("L_f_q1:")
        else:
            A("s_barrier")
    wssrd()
    A("s_mov_b32 s36, s20"); A("s_and_b32 s37, s21, 0xffff"); A("s_mov_b32 s38, 1409024")
    A(f"s_cmp_lg_u32 s3, {7 if o.nox else 3}"); A("s_cbranch_scc1 L_f_nog1")
    A("v_lshlrev_b32 v2, 4, v0")
    A("global_load_dwordx4 v[84:87], v2, s[4:5]")
    A("global_load_dwordx4 v[88:91], v2, s[22:23]")
    A("L_f_nog1:")
    masks()
    A("v_mov_b32 v8, 0xff"); A("v_mov_b32 v92, 0")
    spot()
    A("s_mov_b32 s44, 0x0c0c0400"); A("s_mov_b32 s45, 0x04000c0c")
    A("s_and_b32 s62, s2, 31")
    A("s_lshl_b32 s56, s62, 2"); A("s_add_u32 s56, s56, s3"); A("s_lshl_b32 s56, s56, 11"); A(f"s_add_u32 s56, s56, {H0BASE}")
    A("s_lshl_b32 s57, s30, 4"); A("s_add_u32 s57, s57, s56")
    A("v_lshrrev_b32 v1, 4, v0"); A("v_lshl_add_u32 v1, v10, 1, v1"); A("v_lshlrev_b32 v1, 7, v1")
    A("v_lshlrev_b32 v2, 4, v0")
    if o.pretouch & 8:
        A("s_cmp_lg_u32 s3, 2"); A("s_cbranch_scc1 L_f_nopt")
        A("s_lshl_b32 s60, s62, 13"); A("s_lshl_b32 s61, s30, 10"); A("s_add_u32 s60, s60, s61"); A(f"s_add_u32 s60, s60, {H0BASE}")
        A(f"s_mul_i32 s61, s62, {H1STR}"); A("s_lshl_b32 s58, s30, 9"); A("s_add_u32 s61, s61, s58"); A(f"s_add_u32 s61, s61, {H1BASE - 1024}")
        A("v_mov_b32 v84, s60"); A("v_mov_b32 v85, s61"); A("v_cmp_gt_u32 vcc, 8, v0"); A("v_cndmask_b32 v84, v85, v84, vcc")
        A("v_lshl_add_u32 v84, v0, 7, v84")
        A("s_mov_b64 exec, 0x1fff")
        A("buffer_load_dword v85, v84, s[48:51], 0 offen sc1")
        A("s_mov_b64 exec, -1")
        A("L_f_nopt:")
    A("s_mov_b32 s60, 0x01000100"); A("s_mov_b32 s61, 0x03020302")
    A("s_mov_b32 s59, 0")
    A("s_waitcnt vmcnt(8)")
    for i in range(8):
        A(f"v_perm_b32 v11, v{12+i//2}, v{12+i//2}, s{60+i%2}")
        for d in range(4): A(f"v_and_b32 v{48+4*i+d}, v11, v{4+d}")
    spot()
    A("s_waitcnt lgkmcnt(0)")
    A("s_getreg_b32 s99, hwreg(HW_REG_XCC_ID, 0, 4)"); A("s_lshl_b32 s99, s99, 24")
    A("s_add_u32 s94, s40, 0x01010101"); A("s_xor_b32 s40, s94, s99")
    A("s_lshr_b32 s41, s40, 8"); A("s_lshr_b32 s42, s40, 16"); A("s_lshr_b32 s43, s40, 24")
    if o.atom:
        A("v_cvt_f64_u32 v[94:95], s94"); A("v_ldexp_f64 v[94:95], v[94:95], 6")
        A("s_lshl_b32 s96, s30, 10"); A("s_and_b32 s60, s3, 1"); A("s_lshl_b32 s60, s60, 9"); A("s_add_u32 s96, s96, s60"); A(f"s_add_u32 s96, s96, {H2BASE}")
        A("v_readfirstlane_b32 s90, v94"); A("v_readfirstlane_b32 s91, v95")
        A("s_cmp_lg_u32 s62, s30"); A("s_cbranch_scc1 L_f_noinit")
        A("s_cmp_lg_u32 s3, 2"); A("s_cbranch_scc1 L_f_noinit")
        A("v_mov_b32 v93, 0")
        A("buffer_store_dwordx4 v[92:95], v2, s[48:51], s96 offen sc1")
        A("s_waitcnt vmcnt(1)"); A("s_branch L_f_init")
        A("L_f_noinit:")
        A("s_waitcnt vmcnt(0)")
        A("L_f_init:")
    else:
        A("s_waitcnt vmcnt(0)")
    stamp(2)
    for i in range(8):
        A(f"v_mfma_f32_16x16x32_bf16 v[80:83], v[{48+4*i}:{51+4*i}], v[{16+4*i}:{19+4*i}], " + ("0" if i == 0 else "v[80:83]"))
    for i in range(4): A(f"v_permlane32_swap_b32 v{80+i}, v{12+i}")
    for i in range(4): A(f"v_add_f32_dpp v{80+i}, v{12+i}, v{80+i} row_ror:8 {DP}")
    tagq(80)
    A("s_mov_b64 exec, 0x00ff00ff")
    pubL("v[80:83]", "v1", "s57")
    A("s_mov_b64 exec, -1")
    stamp(3)
    spot()
    A("s_cmp_lg_u32 s3, 3"); A("s_cbranch_scc1 L_f_nog2")
    for i in range(4):
        A(f"v_lshlrev_b32 v16, 16, v{84+i}"); A(f"v_and_b32 v17, 0xffff0000, v{84+i}")
        A(f"v_lshlrev_b32 v18, 16, v{88+i}"); A(f"v_and_b32 v19, 0xffff0000, v{88+i}")
        A("v_mul_f32 v16, v16, v18"); A("v_mul_f32 v17, v17, v19")
        A("v_cvt_pk_bf16_f32 v16, v16, v17")
        A("v_lshlrev_b32 v17, 16, v16"); A("v_and_b32 v16, 0xffff0000, v16")
        if i == 0: A("v_add_f32 v20, v16, v17")
        else: A("v_add_f32 v20, v20, v16"); A("v_add_f32 v20, v20, v17")
    spot()
    red8("v_add_f32", [20])
    A(f"v_add_f32_dpp v20, v20, v20 row_ror:8 {DP}")
    A("v_add_f32_dpp v20, v20, v20 row_bcast:15 row_mask:0xa bank_mask:0xf")
    A("v_add_f32_dpp v20, v20, v20 row_bcast:31 row_mask:0xc bank_mask:0xf")
    A("v_cvt_pk_bf16_f32 v20, v20, v20"); A("v_and_b32 v20, 0xffff0000, v20")
    A("v_mul_f32 v20, 0xbfb8aa3b, v20"); A("v_exp_f32 v20, v20"); A("v_add_f32 v20, 1.0, v20"); A("v_rcp_f32 v20, v20")
    A("v_cvt_pk_bf16_f32 v20, v20, v20"); A("v_and_b32 v20, 0xffff0000, v20")
    A("v_sub_f32 v21, 1.0, v20"); A("v_cvt_pk_bf16_f32 v21, v21, v21"); A("v_and_b32 v21, 0xffff0000, v21")
    A("s_bfm_b64 exec, 1, 63")
    A(f"ds_write_b64 v92, v[20:21] offset:{L_G}")
    A("s_mov_b64 exec, -1")
    A("L_f_nog2:")
    spot()
    if o.wait_pub == 1: A("s_waitcnt vmcnt(0)")
    if o.sleep0: A(f"s_sleep {o.sleep0}")
    if not o.atom: stamp(4)
    A(f"s_mov_b32 s58, {o.nl}"); A("s_mov_b32 s92, s40")
    A("L_p0:")
    A("s_sub_u32 s58, s58, 1"); A("s_cbranch_scc1 L_p0_to")
    A("L_p0_ld:")
    if not o.nohand:
        A("buffer_load_dwordx4 v[16:19], v2, s[48:51], s56 offen sc1")
        A("buffer_load_dwordx4 v[20:23], v2, s[48:51], s56 offen offset:1024 sc1")
    A("s_waitcnt vmcnt(0)")
    chk(16, 24); chk(20, 26)
    A("v_cmp_eq_u32 vcc, s92, v24"); A("v_cmp_eq_u32 s[60:61], s92, v26"); A("s_and_b64 vcc, vcc, s[60:61]")
    A("s_cmp_eq_u64 vcc, exec"); A("s_nop 0" if o.nohand else "s_cbranch_scc0 L_p0")
    stamp(5)
    for r in range(16, 24): A(f"v_and_b32 v{r}, 0xffffff00, v{r}")
    spot()
    red8("v_add_f32", list(range(16, 24)))
    A("v_cvt_pk_bf16_f32 v16, v16, v17"); A("v_cvt_pk_bf16_f32 v17, v18, v19")
    A("v_cvt_pk_bf16_f32 v18, v20, v21"); A("v_cvt_pk_bf16_f32 v19, v22, v23")
    A("s_lshl_b32 s55, s3, 7"); A("v_lshl_add_u32 v1, v9, 3, s55")
    A("ds_write_b64 v1, v[16:17]"); A("ds_write_b64 v1, v[18:19] offset:64")
    A("s_cmp_lt_u32 s3, 2"); A(f"s_cselect_b32 s55, {C_Q}, {C_G}")
    cnt_add("v92", "v1", "s55")
    spot()
    if o.xdirty:
        A("s_lshl_b32 s60, s2, 2"); A("s_add_u32 s60, s60, s3"); A("s_lshl_b32 s60, s60, 9"); A(f"s_add_u32 s60, s60, {GOFF}")
        A("s_mov_b32 exec_hi, 0"); A("buffer_store_dwordx4 v[80:83], v2, s[48:51], s60 offen"); A("s_mov_b32 exec_hi, -1")
    if o.wb:
        A("s_add_u32 s60, s3, s30"); A("s_cmp_lg_u32 s60, 0"); A("s_cbranch_scc1 L_nowb"); A("s_cmp_ge_u32 s2, 8"); A("s_cbranch_scc1 L_nowb")
        A("buffer_wbl2 sc1")
        A("L_nowb:")
    A(f"s_mul_i32 s52, s62, {H1STR}"); A(f"s_add_u32 s52, s52, {H1BASE}"); A("s_lshl_b32 s53, s3, 10"); A("s_add_u32 s53, s53, s52")
    A("s_lshl_b32 s97, s30, 4"); A("s_add_u32 s54, s97, s53"); A("s_add_u32 s52, s52, 4096"); A("s_add_u32 s97, s97, s52")
    A("v_lshlrev_b32 v13, 4, v10"); A("v_lshlrev_b32 v14, 7, v9"); A("v_lshlrev_b32 v12, 4, v0")
    if not o.atom:
        A("s_lshl_b32 s60, s30, 14"); A("s_lshl_b32 s61, s62, 9"); A("s_add_u32 s96, s60, s61"); A(f"s_add_u32 s96, s96, {H2BASE}")
    else:
        A("v_lshlrev_b32 v47, 3, v0")
        A("s_cmp_ge_u32 s3, 2"); A("s_cbranch_scc1 L_f_noai")
        if o.touchout:
            A("s_lshl_b32 s60, s30, 7"); A("v_mov_b32 v15, s60"); A(f"global_load_dword v88, v15, s[24:25] {'nt' if o.touchout == 2 else ''}")
        A("buffer_load_dwordx2 v[94:95], v47, s[48:51], s96 offen sc1")
        A("L_f_noai:")
    if o.pretouch & 2:
        A("buffer_load_dwordx4 v[84:87], v12, s[48:51], s53 offen sc1")
        A("buffer_load_dwordx4 v[88:91], v13, s[48:51], s52 offen sc1")
    spot()
    A("s_mov_b32 s32, s12"); A("s_and_b32 s33, s13, 0xffff"); A("s_mov_b32 s34, 0x400000")
    A("s_lshl_b32 s55, s31, 17"); A("s_lshl_b32 s56, s3, 15"); A("s_add_u32 s55, s55, s56"); A("s_lshl_b32 s56, s30, 7"); A("s_add_u32 s55, s55, s56")
    A("v_lshl_add_u32 v1, v9, 12, v13")
    A("v_lshl_add_u32 v2, v9, 10, v13")
    A("s_add_u32 s57, s46, s3"); A("s_lshl_b32 s57, s57, 13"); A("s_add_u32 s56, s56, s57")
    A("s_add_u32 s57, s3, 4"); A("s_cmp_lt_u32 s57, s47"); A("s_mov_b32 s57, 0x40000000"); A("s_cselect_b32 s57, 0x8000, s57"); A("v_add_u32 v56, s57, v2")
    A("s_lshl_b32 s57, s3, 4"); A("v_lshl_add_u32 v3, v9, 1, s57")
    if o.fakewo:
        A("s_lshl_b32 s55, s31, 17"); A("s_lshl_b32 s57, s30, 14"); A("s_add_u32 s55, s55, s57"); A("s_lshl_b32 s57, s3, 12"); A("s_add_u32 s55, s55, s57")
        A("v_lshlrev_b32 v1, 4, v0")
    spot()
    def late_wo(a, b):
        for i in range(a, b): A(f"buffer_load_dwordx4 v[{24+4*i}:{27+4*i}], v1, s[32:35], s55 offen offset:{1024*i} {ld}")
    def late():
        cnt_wait("wx", "v92", "v15", 4, o.xthr)
        stamp(6)
        A(f"buffer_load_dwordx4 v[16:19], v2, s[36:39], s56 offen {ld}")
        A(f"buffer_load_dwordx4 v[20:23], v56, s[36:39], s56 offen {ld}")
        late_wo(0, 4 - o.lmfirst)
    lpos = 2 if (o.nq < 16 or o.xw < 8) else (1 if o.skipwd else 0)
    if lpos == 0: late()
    def rd_gu():
        A("ds_read_u16 v40, v3 offset:256"); A("ds_read_u16 v41, v3 offset:384")
        A("ds_read_u16 v42, v3 offset:320"); A("ds_read_u16 v43, v3 offset:448")
        A(f"ds_read_b64 v[44:45], v92 offset:{L_G}")
    cnt_wait("wg", "v92", "v15", 8, 2, rd_gu)
    spot()
    for t in range(2):
        A(f"v_lshlrev_b32 v{40+2*t}, 16, v{40+2*t}"); A(f"v_lshlrev_b32 v{41+2*t}, 16, v{41+2*t}")
        A(f"v_max_f32 v{40+2*t}, 0, v{40+2*t}"); A(f"v_mul_f32 v{40+2*t}, v{40+2*t}, v{41+2*t}")
        A(f"v_cvt_pk_bf16_f32 v{40+2*t}, v{40+2*t}, v{40+2*t}")
        if o.skipwd:
            va = "v2" if t == 0 else "v56"
            A(f"v_and_b32 v{41+2*t}, 0x7fff, v{40+2*t}"); A(f"v_cmp_ne_u32 vcc, 0, v{41+2*t}"); A(f"v_mov_b32 v{41+2*t}, 0x40000000"); A(f"v_cndmask_b32 {va}, v{41+2*t}, {va}, vcc")
        for d in range(4): A(f"v_and_b32 v{48+4*t+d}, v{40+2*t}, v{4+d}")
    if lpos == 1: late()
    A(f"v_mul_u32_u24 v46, {PSTR}, v10"); A("v_lshl_add_u32 v46, v9, 4, v46"); A("s_lshl_b32 s57, s3, 7"); A("v_add_u32 v46, s57, v46")
    A("v_bfe_u32 v3, v0, 4, 1"); A("v_lshl_add_u32 v3, v10, 1, v3"); A("v_lshlrev_b32 v3, 4, v3")
    A("v_lshrrev_b32 v47, 5, v0"); A("v_lshl_add_u32 v3, v47, 8, v3"); A("s_lshl_b32 s57, s3, 9"); A("v_add_u32 v3, s57, v3")
    A("v_lshlrev_b32 v47, 3, v0"); A("v_lshlrev_b32 v11, 3, v10")
    def acc_check():
        A("s_cmp_ge_u32 s3, 2"); A("s_cbranch_scc1 L_f_aok")
        if lpos == 2 and not o.pretouch & 2:
            A("s_waitcnt vmcnt(7)"); A("s_cmp_eq_u32 s3, 0"); A("s_cbranch_scc1 L_f_achk"); A("s_waitcnt vmcnt(6)")
        else: A(f"s_waitcnt vmcnt({6 - o.lmfirst})" if lpos < 2 else "s_waitcnt vmcnt(7)")
        A("L_f_achk:")
        A("v_add_f64 v[94:95], v[94:95], -s[90:91]")
        A("s_mov_b32 s60, 0"); A("s_mov_b32 s61, 0x40400000")
        A("v_cmp_le_f64 vcc, 0, v[94:95]"); A("v_cmp_gt_f64 s[60:61], s[60:61], v[94:95]"); A("s_and_b64 vcc, vcc, s[60:61]")
        A("s_or_b32 vcc_lo, vcc_lo, 0x55555555"); A("s_or_b32 vcc_hi, vcc_hi, 0x55555555")
        A("s_cmp_eq_u64 vcc, exec"); A("s_cbranch_scc1 L_f_aok")
        A("s_sub_u32 s93, s93, 1"); A("s_cbranch_scc1 L_end")
        A("buffer_load_dwordx2 v[94:95], v47, s[48:51], s96 offen sc1")
        A("s_waitcnt vmcnt(0)"); A("s_branch L_f_achk")
        A("L_f_aok:")
        A("v_lshrrev_b32 v95, 1, v0"); A("s_lshl_b32 s60, s3, 5"); A("v_add_u32 v95, s60, v95")
        A("v_and_b32 v94, 1, v0"); A("v_lshlrev_b32 v94, 10, v94"); A("v_lshl_add_u32 v94, v95, 2, v94")
        A("s_lshl_b32 s60, s30, 7"); A("v_lshl_add_u32 v95, v95, 1, s60")
        A("s_mov_b32 s60, 0"); A("s_mov_b32 s61, 0x403f0000")
        A("v_mov_b32 v58, s60"); A("v_mov_b32 v59, s61"); A("v_add_f64 v[58:59], v[58:59], s[90:91]")
        A("v_readfirstlane_b32 s90, v58"); A("v_readfirstlane_b32 s91, v59")
        A("s_mov_b32 s88, 0xaaaaaaaa"); A("s_mov_b32 s89, 0xaaaaaaaa")
    if o.atom and lpos < 2: acc_check()
    A(f"s_cmp_eq_u32 s59, 0"); A(f"s_cselect_b32 s58, {o.nl}, 0"); A("s_mov_b32 s59, 0"); A("s_mov_b32 s92, s40")
    A("s_not_b32 s95, s94")
    spot()
    cnt_wait("wm", "v92", "v15", 12, 8, lambda: A(f"ds_read_b64 v[76:77], v11 offset:{L_LM}"))
    stamp(7)
    A("v_mov_b32 v93, v77")
    red8("v_max_f32", [77])
    A("v_sub_f32 v93, v93, v77"); A("v_mul_f32 v93, 0x3fb8aa3b, v93"); A("v_exp_f32 v93, v93")
    A("v_mov_b32 v78, 0"); A("v_mul_f32 v76, v76, v93"); A("v_mov_b32 v79, 0")
    red8("v_add_f32", [76])
    tagq(76)
    A("s_cmp_lg_u32 s3, 0"); A("s_cbranch_scc1 L_f_nolm")
    A("s_mov_b64 exec, 1")
    pubL("v[76:79]", "v92", "s97")
    A("s_mov_b64 exec, -1")
    A("L_f_nolm:")
    late_wo(4 - o.lmfirst, 4)
    if lpos == 2:
        assert not o.lmfirst
        late()
        if o.atom: acc_check()
    spot()
    A("s_barrier")
    A(f"ds_read_b128 v[64:67], v46 offset:{L_PART}")
    stamp(8)
    A("s_waitcnt lgkmcnt(0)")
    for i in range(4): A(f"v_mul_f32 v{64+i}, v93, v{64+i}")
    red8("v_add_f32", [64, 65, 66, 67])
    tagq(64)
    A("s_mov_b32 exec_lo, 0x01010101"); A("s_mov_b32 exec_hi, 0x01010101")
    pubL("v[64:67]", "v14", "s54")
    A("s_mov_b64 exec, -1")
    stamp(11)
    if o.nohand:
        A("s_waitcnt vmcnt(0)"); stamp(9); A("s_barrier"); stamp(10)
        A("s_cmp_lg_u32 s3, 0"); A("s_cbranch_scc1 L_end")
        dump(0, 12, "f"); A("s_endpgm")
    A("buffer_load_dwordx4 v[72:75], v13, s[48:51], s52 offen sc1")
    A("buffer_load_dwordx4 v[68:71], v12, s[48:51], s53 offen sc1")
    A("s_waitcnt vmcnt(7)")
    A("v_mfma_f32_16x16x32_bf16 v[80:83], v[48:51], v[16:19], 0")
    A("v_mfma_f32_16x16x32_bf16 v[80:83], v[52:55], v[20:23], v[80:83]")
    for i in range(4): A(f"v_mul_f32 v{80+i}, v45, v{80+i}")
    A("s_branch L_p1_c")
    spot()
    A("L_p1:")
    if o.p1sleep: A(f"s_sleep {o.p1sleep}")
    A("s_sub_u32 s58, s58, 1"); A("s_cbranch_scc1 L_p1_to")
    A("L_p1_ld:")
    if o.lmonly:
        A("s_mov_b64 exec, 0xff")
        A("buffer_load_dword v75, v13, s[48:51], s52 offen offset:12 sc1")
        A("s_lshr_b32 s60, s92, 24")
        A("s_waitcnt vmcnt(0)")
        A("v_cmp_eq_u32 vcc, s60, v75")
        A("s_cmp_eq_u64 vcc, exec"); A("s_mov_b64 exec, -1"); A("s_cbranch_scc0 L_p1")
    A("buffer_load_dwordx4 v[72:75], v13, s[48:51], s52 offen sc1")
    A("buffer_load_dwordx4 v[68:71], v12, s[48:51], s53 offen sc1")
    A("L_p1_c:")
    A("s_waitcnt vmcnt(1)")
    chk(72, 42)
    A("v_cmp_eq_u32 vcc, s92, v42")
    A("v_and_b32 v73, 0xffff0000, v73")
    A("s_cmp_eq_u64 vcc, exec"); A("s_cbranch_scc0 L_p1")
    A("v_and_b32 v72, 0xffffff00, v72")
    A(f"v_max_f32_dpp v74, v73, v73 quad_perm:[1,0,3,2] {DP}")
    A(f"v_max_f32_dpp v74, v74, v74 quad_perm:[2,3,0,1] {DP}")
    A(f"v_max_f32_dpp v74, v74, v74 row_half_mirror {DP}")
    A("v_sub_f32 v73, v73, v74"); A("v_mul_f32 v73, 0x3fb8aa3b, v73"); A("v_exp_f32 v73, v73")
    A("v_mul_f32 v72, v73, v72"); A("v_mul_f32 v73, v44, v73")
    red8("v_add_f32", [72])
    A("v_rcp_f32 v72, v72"); A("v_mul_f32 v73, v73, v72")
    A("s_branch L_p1b_c")
    A("L_p1b:")
    if o.p1sleep: A(f"s_sleep {o.p1sleep}")
    A("s_sub_u32 s58, s58, 1"); A("s_cbranch_scc1 L_p1_to")
    A("buffer_load_dwordx4 v[68:71], v12, s[48:51], s53 offen sc1")
    A("L_p1b_c:")
    A("s_waitcnt vmcnt(0)")
    chk(68, 40)
    A("v_cmp_eq_u32 vcc, s92, v40")
    for i in range(4): A(f"v_and_b32 v{68+i}, 0xffffff00, v{68+i}") if i < 2 else None
    A("s_cmp_eq_u64 vcc, exec"); A("s_cbranch_scc0 L_p1b")
    stamp(9)
    for i in range(2, 4): A(f"v_and_b32 v{68+i}, 0xffffff00, v{68+i}")
    for i in range(4): A(f"v_mul_f32 v{68+i}, v73, v{68+i}")
    red8("v_add_f32", [68, 69, 70, 71])
    spot()
    for i in range(4): A(f"v_cvt_pk_bf16_f32 v{68+i}, v{68+i}, v{68+i}")
    for i in range(4):
        for d in range(4): A(f"v_and_b32 v{48+4*i+d}, v{68+i}, v{4+d}")
        if i: A(f"v_mfma_f32_16x16x32_bf16 v[80:83], v[{44+4*i}:{47+4*i}], v[{20+4*i}:{23+4*i}], v[80:83]")
    A("v_mfma_f32_16x16x32_bf16 v[80:83], v[60:63], v[36:39], v[80:83]")
    if o.atom:
        A("v_mov_b32 v58, 0x3ff00000")
        A("s_mov_b32 exec_lo, 0x00ff00ff"); A("s_mov_b32 exec_hi, 0xff00ff00")
        A("s_cmp_ge_u32 s3, 2")
        spot()
        A(f"ds_write_b128 v3, v[80:83] offset:{L_Y}")
        A("s_mov_b64 exec, -1")
        A("s_waitcnt lgkmcnt(0)")
        A("s_barrier")
        A("s_cbranch_scc1 L_end")
        A(f"ds_read2st64_b32 v[16:17], v94 offset0:{L_Y//256} offset1:{L_Y//256+1}")
        A(f"ds_read2st64_b32 v[18:19], v94 offset0:{L_Y//256+2} offset1:{L_Y//256+3}")
        A("s_waitcnt lgkmcnt(0)")
        A("v_pk_add_f32 v[16:17], v[16:17], v[18:19]"); A("v_add_f32 v16, v16, v17")
        A(f"v_add_f32_dpp v16, v16, v16 quad_perm:[1,0,3,2] {DP}")
        A("v_cvt_f64_f32 v[18:19], v16")
        A("v_cndmask_b32 v20, v18, v92, s[88:89]"); A("v_cndmask_b32 v21, v19, v58, s[88:89]")
        A("buffer_atomic_add_f64 v[20:21], v47, s[48:51], s96 offen sc0 sc1")
        stamp(10)
        A("s_or_b32 s60, s30, s3")
        A("s_waitcnt vmcnt(0)")
        A("v_cmp_eq_u64 vcc, s[90:91], v[20:21]")
        A("v_add_f64 v[18:19], v[18:19], v[20:21]")
        A("s_and_b64 vcc, vcc, s[88:89]"); A("s_lshr_b64 exec, vcc, 1"); A("L_nopad:")
        A("s_cbranch_execz L_f_fin")
        A("v_cvt_f32_f64 v16, v[18:19]"); A("v_cvt_pk_bf16_f32 v16, v16, v16")
        A(f"global_store_short v95, v16, s[24:25] {o.sto}")
        A("s_cmp_lg_u32 s60, 0"); A("s_cbranch_scc1 L_f_fin")
        A("s_and_b64 exec, exec, 1"); A("s_cbranch_execz L_f_fin")
        A("v_mov_b32 v16, s94")
        A("global_store_dword v92, v16, s[28:29]")
        A("L_f_fin:")
        stamp(4)
        if o.stamps:
            A("s_cmp_lg_u32 s3, 0"); A("s_cbranch_scc1 L_end")
    else:
        A("v_lshlrev_b32 v1, 4, v0")
        A("v_mov_b32 v58, s94"); A("v_mov_b32 v59, s95")
        A("s_mov_b32 exec_lo, 0x00ff00ff"); A("s_mov_b32 exec_hi, 0xff00ff00")
        A("s_cmp_lg_u32 s3, 0")
        spot()
        A(f"ds_write_b128 v3, v[80:83] offset:{L_Y}")
        A("s_mov_b32 exec_lo, -1"); A("s_mov_b32 exec_hi, 0")
        A("s_waitcnt lgkmcnt(0)")
        A("s_barrier")
        A("s_cbranch_scc1 L_end")
        for k in range(8): A(f"ds_read_b64 v[{16+2*k}:{17+2*k}], v47 offset:{L_Y+256*k}")
        A("s_waitcnt lgkmcnt(0)")
        for k in range(4): A(f"v_pk_add_f32 v[{16+4*k}:{17+4*k}], v[{16+4*k}:{17+4*k}], v[{18+4*k}:{19+4*k}]")
        A("v_pk_add_f32 v[16:17], v[16:17], v[20:21]"); A("v_pk_add_f32 v[24:25], v[24:25], v[28:29]")
        A("v_pk_add_f32 v[56:57], v[16:17], v[24:25]")
        A(f"buffer_store_dwordx4 v[56:59], v1, s[48:51], s96 offen sc1")
        stamp(10)
    dump(0, 12, "f")
    A("s_endpgm")
    spot()
    A("L_kv:"); inkv[0] = True
    masks()
    wssrd()
    A("v_and_b32 v2, 15, v0"); A("v_lshlrev_b32 v3, 4, v2")
    A("v_lshrrev_b32 v9, 4, v0")
    A(f"s_mul_i32 s57, s3, {PSTR}")
    A("v_lshl_add_u32 v11, v2, 1, v9"); A("v_lshl_add_u32 v11, v11, 4, s57")
    A("s_lshl_b32 s57, s3, 3"); A("v_mov_b32 v2, s57")
    for n in range(o.n1, o.nq): kvload(n)
    if o.nq == 16 and o.xw == 8: cnt_add("v8", "v10", C_X)
    stamp(2)
    spot()
    cnt_wait("wq", "v8", "v10", 0, 2, lambda: A("ds_read_b128 v[12:15], v3"))
    assert o.order[:o.nq].count("K") == 8
    A(f"s_waitcnt vmcnt({o.nq - 1 - o.order.rindex('K')})")
    stamp(3)
    for d in range(4):
        for i in range(8):
            A(f"v_dot2_f32_bf16 v{16+i}, v{32+4*i+d}, v{12+d}, " + ("0" if d == 0 else f"v{16+i}"))
    spot()
    for k in range(4): A(f"v_add_f32_dpp v{16+k}, v{16+k}, v{16+k} row_ror:8 row_mask:0xf bank_mask:0x3")
    for k in range(4): A(f"v_add_f32_dpp v{16+k}, v{20+k}, v{20+k} row_ror:8 row_mask:0xf bank_mask:0xc")
    for k in range(2): A(f"v_add_f32_dpp v{16+k}, v{16+k}, v{16+k} row_half_mirror row_mask:0xf bank_mask:0x5")
    for k in range(2): A(f"v_add_f32_dpp v{16+k}, v{18+k}, v{18+k} row_half_mirror row_mask:0xf bank_mask:0xa")
    for pat in ("quad_perm:[1,0,3,2]", "quad_perm:[2,3,0,1]"):
        for k in range(2): A(f"v_add_f32_dpp v{16+k}, v{16+k}, v{16+k} {pat} {DP}")
    A("v_cvt_pk_bf16_f32 v17, v16, v17")
    A("v_lshlrev_b32 v16, 16, v17"); A("v_and_b32 v17, 0xffff0000, v17")
    A("v_mul_f32 v16, 0x3db504f3, v16"); A("v_mul_f32 v17, 0x3db504f3, v17")
    A("v_cvt_pk_bf16_f32 v17, v16, v17")
    A("v_lshlrev_b32 v16, 16, v17"); A("v_and_b32 v17, 0xffff0000, v17")
    A("v_max_f32 v25, v16, v17")
    A(f"v_max_f32_dpp v25, v25, v25 row_ror:4 {DP}"); A(f"v_max_f32_dpp v25, v25, v25 row_ror:8 {DP}")
    A("v_max_f32_dpp v25, v25, v25 row_bcast:15 row_mask:0xa bank_mask:0xf")
    A("v_max_f32_dpp v25, v25, v25 row_bcast:31 row_mask:0xc bank_mask:0xf")
    A("v_readlane_b32 s57, v25, 63")
    spot()
    for k in range(2): A(f"v_subrev_f32 v{16+k}, s57, v{16+k}")
    for k in range(2): A(f"v_mul_f32 v{16+k}, 0x3fb8aa3b, v{16+k}")
    for k in range(2): A(f"v_exp_f32 v{16+k}, v{16+k}")
    A(f"v_mov_b32 v10, {C_M}")
    A("v_add_f32 v24, v16, v17")
    for k in range(2): A(f"v_cvt_pk_bf16_f32 v{16+k}, v{16+k}, v{16+k}")
    extra = [f"v_add_f32_dpp v24, v24, v24 row_ror:4 {DP}", f"v_add_f32_dpp v24, v24, v24 row_ror:8 {DP}",
             "v_add_f32_dpp v24, v24, v24 row_bcast:15 row_mask:0xa bank_mask:0xf", "v_add_f32_dpp v24, v24, v24 row_bcast:31 row_mask:0xc bank_mask:0xf"]
    stamp(4)
    for i in range(8):
        for d in range(4):
            if i < 2 and d % 2 == 0: A(extra[2*i + d//2])
            A(f"v_and_b32_dpp v{32+4*i+d}, v{16+i%2}, v{4+d} row_newbcast:{4*(i//2)} {DP}")
        if i == 1:
            A("s_bfm_b64 exec, 1, 63")
            A(f"ds_write_b64 v2, v[24:25] offset:{L_LM}")
            A(f"ds_add_u32 v8, v10 offset:{L_CNT}")
            A("s_mov_b64 exec, -1")
            if o.nq < 16:
                for n in range(o.nq, 16): kvload(n)
                if o.xw == 8: cnt_add("v8", "v10", C_X)
        if i == 3: spot()
    stamp(5)
    for i in range(8):
        A(f"s_waitcnt vmcnt({7-i})")
        if 7 - i == o.xw: cnt_add("v8", "v10", C_X)
        A(f"v_mfma_f32_16x16x32_bf16 v[28:31], v[{32+4*i}:{35+4*i}], v[{64+4*i}:{67+4*i}], " + ("0" if i == 0 else "v[28:31]"))
    stamp(6)
    A("s_mov_b32 exec_hi, 0")
    A(f"s_cmp_gt_u32 s3, {1 if o.refresh else 0}")
    A(f"ds_write_b128 v11, v[28:31] offset:{L_PART}")
    A("s_waitcnt lgkmcnt(0)")
    A("s_barrier")
    if o.stamps and not o.probe:
        A("s_cbranch_scc0 L_c")
        A(f"s_cmp_lg_u32 s3, {o.stw}"); A("s_cbranch_scc1 L_end")
        stamp(7)
        dump(16, 9, "kv")
        A("s_endpgm")
        A("L_c:")
    else:
        A("s_cbranch_scc1 L_end")
    spot()
    if o.nohand or o.atom: A("s_endpgm")
    if not o.atom:
        A("s_and_b32 s60, s2, 7"); A("s_lshr_b32 s61, s2, 3")
        A("s_lshl_b32 s97, s60, 14"); A("s_lshl_b32 s98, s61, 4"); A("s_add_u32 s97, s97, s98"); A(f"s_add_u32 s97, s97, {H2BASE}")
        A("s_lshl_b32 s60, s60, 7"); A("s_lshl_b32 s61, s61, 2"); A("s_add_u32 s98, s60, s61")
        A("v_lshlrev_b32 v15, 9, v0")
        if o.refresh:
            A("s_cmp_eq_u32 s3, 1"); A("s_cbranch_scc1 L_r")
        if o.pretouch & 4: A("buffer_load_dwordx4 v[16:19], v15, s[48:51], s97 offen sc1")
        A("s_add_u32 s94, s40, 0x01010101"); A("s_not_b32 s95, s94"); A("v_mov_b32 v34, s94")
        A("v_mov_b32 v1, s98"); A(f"v_mov_b32 v10, {C_DONE}")
        A("s_barrier")
        stamp(9)
        A("L_p2:")
        if o.p2sleep: A(f"s_sleep {o.p2sleep}")
        A("buffer_load_dwordx4 v[16:19], v15, s[48:51], s97 offen sc1")
        A("s_sub_u32 s93, s93, 1"); A("s_cbranch_scc1 L_end")
        A("s_waitcnt vmcnt(0)")
        if o.p2mask:
            A("v_cmp_ne_u64 vcc, s[94:95], v[18:19]")
            A("s_and_b32 exec_lo, exec_lo, vcc_lo"); A("s_cbranch_scc1 L_p2")
            A("s_mov_b32 exec_lo, -1")
        else:
            A("v_cmp_eq_u64 vcc, s[94:95], v[18:19]")
            A("s_cmp_eq_u64 vcc, exec"); A("s_cbranch_scc0 L_p2")
        stamp(10)
        if o.refresh: A(f"ds_write_b32 v8, v10 offset:{L_CNT}")
        red8("v_add_f32", [16, 17])
        for r in (16, 17): A(f"v_add_f32_dpp v{r}, v{r}, v{r} row_ror:8 {DP}")
        for r in (16, 17): A(f"v_add_f32_dpp v{r}, v{r}, v{r} row_bcast:15 row_mask:0xa bank_mask:0xf")
        A("v_cvt_pk_bf16_f32 v16, v16, v17")
        A("s_mov_b32 exec_lo, 0x80000000")
        A(f"global_store_dword v1, v16, s[24:25] {o.sto}")
        A("s_cmp_lg_u32 s2, 0"); A("s_cbranch_scc1 L_c_fin")
        A("global_store_dword v8, v34, s[28:29]")
        A("L_c_fin:")
        stamp(11)
        if o.stamps and not o.probe:
            for k in (9, 10, 11): A("s_waitcnt lgkmcnt(0)"); A(f"s_mov_b64 s[{64+2*(k-9)}:{65+2*(k-9)}], s[{64+2*k}:{65+2*k}]")
        dump(26, 3, "c")
        if o.refresh:
            A("s_endpgm")
            A("L_r:")
            if o.refresh == 2:
                A("s_lshr_b32 s61, s2, 3"); A("s_and_b32 s61, s61, 7"); A("s_lshl_b32 s61, s61, 2"); A("s_lshl_b32 exec_lo, 15, s61")
            A("s_barrier")
            def rl():
                A("buffer_load_dword v16, v15, s[48:51], s97 offen sc1"); A("s_waitcnt vmcnt(24)")
            cnt_wait("wr", "v8", "v10", 16, 1, rl)
    A("L_end:")
    A("s_endpgm")
    A("L_cold:")
    def timeout(name, pubs, addrs):
        A(f"L_{name}_to:")
        A("s_sub_u32 s93, s93, 1"); A("s_cbranch_scc1 L_end")
        A("s_cmp_lg_u32 s59, 0"); A(f"s_cbranch_scc1 L_{name}_t2")
        A("s_mov_b32 s59, 1")
        for lo, hi, r, va, so in pubs:
            A(f"s_mov_b32 exec_lo, {lo}"); A(f"s_mov_b32 exec_hi, {hi}")
            pubG(r, va, so)
        A("s_mov_b64 exec, -1")
        A(f"L_{name}_t2:")
        for a in addrs: A(f"s_xor_b32 {a}, {a}, {GOFF}")
        A("s_xor_b32 s92, s92, s99"); A("s_mov_b32 s58, 0"); A(f"s_branch L_{name}_ld")
    timeout("p0", [("0x00ff00ff", "0", 80, "v1", "s57")], ["s56"])
    timeout("p1", [("0x01010101", "0x01010101", 64, "v14", "s54"), ("1", "0", 76, "v92", "s97")], ["s52", "s53"])


    txt = HEADER + f"; @launch grid=(256,1,1) block=(768,1,1) lds={LDS_BYTES}\n"
    txt += '.amdgcn_target "amdgcn-amd-amdhsa--gfx950"\n.text\n'
    if o.align: txt += ".p2align 12\n" + (f".fill {64*o.pre}, 4, 0xbf800000\n" if o.pre else "")
    txt += f".globl {KN}\n.p2align 8\n.type {KN},@function\n{KN}:\n"
    txt += "@@BODY@@"
    txt += f""".section .rodata,"a"
.p2align 6
.amdhsa_kernel {KN}
  .amdhsa_next_free_vgpr 96
  .amdhsa_next_free_sgpr 100
  .amdhsa_accum_offset 96
  .amdhsa_group_segment_fixed_size 0
  .amdhsa_kernarg_size 104
  .amdhsa_user_sgpr_count 2
  .amdhsa_user_sgpr_kernarg_segment_ptr 1
  .amdhsa_system_sgpr_workgroup_id_x 1
  .amdhsa_float_denorm_mode_32 3
.end_amdhsa_kernel
"""
    return txt, finalize(L).rstrip("\n").split("\n")

NPAD = 6
def place_pads(o, txt, body):
    import build
    isins = lambda l: l.startswith("    ")
    lab = []
    for i, l in enumerate(body):
        if isins(l): lab.append(f"I{i}:")
        lab.append(l)
    lab += [f".set PAD{w}, L_back" for w in range(NPAD)]
    open(o.out, "w").write(txt.replace("@@BODY@@", "\n".join(lab) + "\n")); build.build(o.out)
    d = syms(o.out[:-2] + ".co")
    idx = [i for i, l in enumerate(body) if isins(l)]
    size = {i: (d[f"I{j}"] - d[f"I{i}"]) for i, j in zip(idx, idx[1:])}; size[idx[-1]] = 4
    nxt = lambda a: min((a & ~63) + 17*64, (a | 4095) + 1)
    out, addr, n = [], d[KN], 0
    bound = nxt(addr); info = []
    i = 0; nopad = False
    while i < len(body):
        l = body[i]
        if l == "L_cold:":
            out += body[i:]; break
        if l == "L_nopad:": nopad = True
        if l == "L_kv:": nopad = False
        if l == "L_kv:":
            if addr >= bound + 64: info.append("UNCOVERED F TAIL")
            if addr < bound: out.append(f".fill {(bound-addr)//4}, 4, 0xbf800000"); addr = bound
            info.append(("kv", hex(addr))); bound = nxt(addr)
        elif isins(l) and addr >= bound and not nopad:
            j, a = i, addr; pick = None
            while j < len(body) and a < bound + 64 and body[j] not in ("L_kv:", "L_nopad:", "L_cold:"):
                if isins(body[j]):
                    if body[j].split()[0] == "s_nop": pick = j; break
                    a += size[j]
                j += 1
            if pick is not None:
                while i < pick:
                    out.append(body[i]); addr += size.get(i, 0); i += 1
                k = int(body[i].split()[1])
                out += [f"PAD{n}:", "    s_cbranch_execz L_back"]; info.append((n, hex(addr))); bound = nxt(addr); addr += 4; n += 1
                if k: out.append(f"    s_nop {k-1}"); addr += 4
                i += 1; continue
            out += [f"PAD{n}:", "    s_cbranch_execz L_back"]; info.append((n, hex(addr))); bound = nxt(addr); addr += 4; n += 1
        out.append(l); addr += size.get(i, 0); i += 1
    assert n <= NPAD, n
    out = [re.sub(r"PAD(\d+)$", lambda m: m.group(0) if int(m.group(1)) < n else "L_back", x) for x in out]
    print("entry %x pads %s end %x" % (d[KN], info, addr), file=sys.stderr)
    return out

def parse(argv):
    p = argparse.ArgumentParser()
    p.add_argument("out")
    p.add_argument("--ld", default="nt"); p.add_argument("--ldf", default="none"); p.add_argument("--sto", default="none")
    p.add_argument("--stamps", type=int, default=0); p.add_argument("--stw", type=int, default=7)
    p.add_argument("--hmap", default="hi"); p.add_argument("--probe", default=""); p.add_argument("--scramble", type=int, default=0)
    p.add_argument("--depths", default="3333333333444444"); p.add_argument("--n0", type=int, default=1); p.add_argument("--n1", type=int, default=3)
    p.add_argument("--xthr", type=int, default=8); p.add_argument("--nl", type=int, default=300); p.add_argument("--gulate", type=int, default=0)
    p.add_argument("--wait_pub", type=int, default=1); p.add_argument("--sleep0", type=int, default=0); p.add_argument("--spin", type=int, default=400000)
    p.add_argument("--pretouch", type=int, default=2); p.add_argument("--align", type=int, default=1); p.add_argument("--warm", type=int, default=1)
    p.add_argument("--refresh", type=int, default=0); p.add_argument("--fakewo", type=int, default=0); p.add_argument("--order", default="K"*8 + "V"*8); p.add_argument("--xw", type=int, default=8); p.add_argument("--pol", default="ddddnnnnnnnnnnnn"); p.add_argument("--gu", default=""); p.add_argument("--nof", type=int, default=0); p.add_argument("--nox", type=int, default=0); p.add_argument("--pat", default="wis"); p.add_argument("--pstep", type=int, default=0x2000); p.add_argument("--hrot", type=int, default=0); p.add_argument("--stl", default="none"); p.add_argument("--xdirty", type=int, default=0); p.add_argument("--wb", type=int, default=0); p.add_argument("--touchout", type=int, default=0); p.add_argument("--nq", type=int, default=14); p.add_argument("--skipwd", type=int, default=1); p.add_argument("--pre", type=int, default=1); p.add_argument("--lmfirst", type=int, default=0); p.add_argument("--atom", type=int, default=1); p.add_argument("--sxor", type=int, default=0); p.add_argument("--p1sleep", type=int, default=0); p.add_argument("--lmonly", type=int, default=0); p.add_argument("--nohand", type=int, default=0)
    p.add_argument("--p2mask", type=int, default=0); p.add_argument("--p2sleep", type=int, default=0); p.add_argument("--csleep", type=int, default=2)
    o = p.parse_args(argv)
    for k in ("ld", "ldf", "sto", "stl"):
        if getattr(o, k) == "none": setattr(o, k, "")
        setattr(o, k, getattr(o, k).replace("+", " "))
    return o
if __name__ == "__main__":
    import build
    o = parse(sys.argv[1:])
    txt, body = gen(o)
    if o.warm: body = place_pads(o, txt, body)
    open(o.out, "w").write(txt.replace("@@BODY@@", "\n".join(body) + "\n"))
    print(build.build(o.out))
    d = syms(o.out[:-2] + ".co")
    print("check:", {k: hex(v) for k, v in d.items() if k.startswith("PAD") or k in ("L_kv", "L_end")}, file=sys.stderr)
```

```python
import sys, argparse, subprocess, re
from asmlib import finalize
from gen2 import syms, choose_pads
KN = "gated_mix__sliding_block_cached__glu_gated_reglu__decode_kernel"
HEADER = open("gated_mix__sliding_block_cached__glu_gated_reglu__decode.s.ref").read().split("; Override launch")[0]

H0BASE = 4096
H1BASE = H0BASE + 32*4*8*256
H1STR = 33*128
GOFF = 0x80000
H2BASE = 2*GOFF
WSUSE = H2BASE + 256*512
L_Q = 0; L_G = 512; L_CNT = 520; L_LM = 528; L_F = 592; L_T = 624; L_PART = 768; PSTR = 576; L_Y = L_PART + 8*PSTR
LDS_BYTES = L_Y + 8*256
C_Q, C_X, C_G, C_M, C_DONE = 1, 16, 256, 4096, 65536
DP = "row_mask:0xf bank_mask:0xf"

DOC = """;
;   attention   : flash-decoding partials {o, max, sum}, all-gathered (hand-off 1)
; Hand-off words are 16-byte granules whose low bytes hold a tag derived from ws[0]; the last adder of
; Groups that share an XCD exchange through its L2; any other placement falls back to write-through copies.
;
"""
def gen(o, pads=None):
    L = []
    A = L.append
    ld = o.ld
    spots = [0]
    inkv = [False]
    def spot(): pass
    def stamp(k):
        if o.probe and (k not in (0, int(o.probe.split(":")[2])) or (k and inkv[0])): return
        if o.stamps == 3:
            m = {0: 0, 6: 1, 8: 2, 11: 3, 20: 4, 9: 5, 21: 6, 4: 7}
            if k in m and not (inkv[0] and k): A(f"s_memrealtime s[{64+2*m[k]}:{65+2*m[k]}]")
            return
        if k >= 20: return
        if o.stamps: A(f"s_memrealtime s[{64+2*k}:{65+2*k}]")
    def dump(base, n, lbl):
        if o.probe:
            role, k0, k1, amp, basec, wg = o.probe.split(":")
            if role != lbl: return
            k0, k1, amp, basec, wg = int(k0), int(k1), int(amp), int(basec), int(wg)
            A("s_waitcnt lgkmcnt(0)")
            if o.gstat:
                A("s_mov_b64 exec, 1"); A("s_lshl_b32 s60, s2, 3"); A(f"s_add_u32 s60, s60, {GOFF}")
                A(f"v_mov_b32 v16, s64"); A(f"v_mov_b32 v17, s{64+2*k1}"); A("buffer_store_dwordx2 v[16:17], v92, s[48:51], s60 offen sc1")
                A(f"s_cmp_lg_u32 s2, {wg}"); A("s_cbranch_scc1 L_end")
                A("L_gs:"); A("s_memrealtime s[62:63]"); A("s_waitcnt lgkmcnt(0)"); A("s_sub_u32 s62, s62, s64"); A("s_cmp_lt_u32 s62, 1500"); A("s_cbranch_scc1 L_gs")
                A("s_mov_b64 exec, -1"); A("v_lshlrev_b32 v1, 5, v0"); A(f"s_mov_b32 s60, {GOFF}")
                A("buffer_load_dwordx4 v[16:19], v1, s[48:51], s60 offen sc1"); A("buffer_load_dwordx4 v[20:23], v1, s[48:51], s60 offen offset:16 sc1")
                A("s_waitcnt vmcnt(0)")
                A("s_sub_u32 s61, s64, 1000")
                for r in range(16, 24): A(f"v_subrev_u32 v{r}, s61, v{r}")
                A("v_min_u32 v16, v16, v18"); A("v_min3_u32 v16, v16, v20, v22")
                op = {"max": "v_max_u32", "min": "v_min_u32", "avg": "v_add_u32"}[o.gstat]
                A(f"{op} v17, v17, v19"); A(f"{op} v21, v21, v23"); A(f"{op} v17, v17, v21")
                for pat in ("quad_perm:[1,0,3,2]", "quad_perm:[2,3,0,1]", "row_half_mirror", "row_ror:8"):
                    A(f"v_min_u32_dpp v16, v16, v16 {pat} {DP}"); A(f"{op}_dpp v17, v17, v17 {pat} {DP}")
                for pat in ("row_bcast:15 row_mask:0xa bank_mask:0xf", "row_bcast:31 row_mask:0xc bank_mask:0xf"):
                    A(f"v_min_u32_dpp v16, v16, v16 {pat}"); A(f"{op}_dpp v17, v17, v17 {pat}")
                if o.gstat == "avg": A("v_lshrrev_b32 v17, 8, v17")
                A("v_sub_u32 v17, v17, v16"); A("v_readlane_b32 s60, v17, 63"); A("s_nop 3")
                A(f"s_mul_i32 s60, s60, {amp}"); A(f"s_add_u32 s60, s60, {basec}"); A("s_min_u32 s60, s60, 100000")
                A(f"L_spin_{lbl}:")
                A("s_memrealtime s[62:63]"); A("s_waitcnt lgkmcnt(0)"); A("s_sub_u32 s62, s62, s64"); A("s_cmp_lt_u32 s62, s60"); A(f"s_cbranch_scc1 L_spin_{lbl}")
                return
            if wg >= 0:
                A(f"s_cmp_lg_u32 s2, {wg}"); A("s_cbranch_scc1 L_end")
            A(f"s_sub_u32 s60, s{64+2*k1}, s{64+2*k0}"); A(f"s_mul_i32 s60, s60, {amp}"); A(f"s_add_u32 s60, s60, {basec}")
            A("s_min_u32 s60, s60, 100000")
            A(f"L_spin_{lbl}:")
            A("s_memrealtime s[62:63]"); A("s_waitcnt lgkmcnt(0)"); A("s_sub_u32 s62, s62, s64"); A("s_cmp_lt_u32 s62, s60"); A(f"s_cbranch_scc1 L_spin_{lbl}")
            return
        if not o.stamps: return
        if o.stamps == 3:
            if lbl != "f": return
            n = 8
        A("s_waitcnt lgkmcnt(0)")
        A("s_mov_b64 exec, 1")
        A("s_lshl_b32 s60, s2, 8"); A("s_add_u32 s62, s28, s60"); A("s_addc_u32 s63, s29, 0")
        A("s_add_u32 s62, s62, 0x8000000"); A("s_addc_u32 s63, s63, 0")
        A("v_mov_b32 v3, 0")
        if o.stamps == 3: A("s_lshl_b32 s60, s3, 6"); A("v_mov_b32 v3, s60")
        for k in range(n):
            A(f"v_mov_b32 v4, s{64+2*k}"); A(f"v_mov_b32 v5, s{65+2*k}")
            A(f"global_store_dwordx2 v3, v[4:5], s[62:63] offset:{8*(base+k)}")
            A("s_nop 1")
    def tagq(r):
        for i in range(4): A(f"v_bfi_b32 v{r+i}, v8, s{40+i}, v{r+i}")
    def chk(r, t):
        A(f"v_perm_b32 v{t}, v{r+1}, v{r}, s44")
        A(f"v_perm_b32 v{t+1}, v{r+3}, v{r+2}, s45")
        A(f"v_or_b32 v{t}, v{t}, v{t+1}")
    def red8(op, rs):
        for pat in ("quad_perm:[1,0,3,2]", "quad_perm:[2,3,0,1]", "row_half_mirror"):
            for r in rs: A(f"{op}_dpp v{r}, v{r}, v{r} {pat} {DP}")
    def masks():
        A("v_and_b32 v2, 1, v0"); A("v_lshlrev_b32 v2, 4, v2"); A("v_mov_b32 v3, 0xffff"); A("v_lshlrev_b32 v2, v2, v3")
        A("v_bfe_u32 v3, v0, 1, 2")
        for d in range(4):
            A(f"v_cmp_eq_u32 vcc, {d}, v3"); A(f"v_cndmask_b32 v{4+d}, 0, v2, vcc")
    def wssrd():
        if o.karg:
            A("s_load_dwordx8 s[20:27], s[0:1], 64"); A("s_load_dwordx2 s[28:29], s[0:1], 96"); A("s_waitcnt lgkmcnt(0)")
        A("s_load_dword s40, s[28:29], 0")
        A("s_mov_b32 s48, s28"); A("s_and_b32 s49, s29, 0xffff"); A(f"s_mov_b32 s50, {WSUSE}"); A("s_mov_b32 s51, 0x20000")
    def pubL(regs, va, so):
        if o.nohand: return
        A(f"buffer_store_dwordx4 {regs}, {va}, s[48:51], {so} offen {o.stl}")
    def pubG(r, va, so):
        A("s_lshr_b32 s60, s94, 24"); A(f"v_bfi_b32 v{r+3}, v8, s60, v{r+3}"); A(f"s_add_u32 s60, {so}, {GOFF}")
        A(f"buffer_store_dwordx4 v[{r}:{r+3}], {va}, s[48:51], s60 offen sc1")
    def cnt_add(vz, vt, val):
        A(f"v_mov_b32 {vt}, {val}"); A("s_mov_b64 exec, 1"); A(f"ds_add_u32 {vz}, {vt} offset:{L_CNT}"); A("s_mov_b64 exec, -1")
    def cnt_wait(name, vz, vt, shift, need, extra=None):
        if o.csleep and name != "wr":
            A(f"s_branch L_{name}_1"); A(f"L_{name}:"); A(f"s_sleep {o.csleep}"); A(f"L_{name}_1:")
        else: A(f"L_{name}:")
        A(f"ds_read_b32 {vt}, {vz} offset:{L_CNT}")
        if extra: extra()
        A("s_sub_u32 s93, s93, 1"); A("s_cbranch_scc1 L_end")
        A("s_waitcnt lgkmcnt(0)")
        A(f"v_readfirstlane_b32 s60, {vt}"); A(f"s_bfe_u32 s60, s60, {(4 << 16) | shift:#x}"); A(f"s_cmp_ge_u32 s60, {need}")
        A(f"s_cbranch_scc0 L_{name}")

    stamp(0)
    A("s_load_dwordx16 s[4:19], s[0:1], 0")
    if not o.karg:
        A("s_load_dwordx8 s[20:27], s[0:1], 64")
        A("s_load_dwordx2 s[28:29], s[0:1], 96")
    A("s_cmp_ge_u32 s2, 256"); A("s_cbranch_scc1 L_end")
    if o.scramble:
        A("s_lshr_b32 s3, s2, 5"); A("s_and_b32 s3, s3, %d" % o.scramble); A("s_xor_b32 s2, s2, s3")
    A("v_lshrrev_b32 v1, 6, v0")
    A("v_and_b32 v0, 63, v0")
    A("v_readfirstlane_b32 s3, v1")
    A("s_lshr_b32 s30, s2, 5")
    if o.sxor: A(f"s_xor_b32 s30, s30, {o.sxor}")
    if o.xperm:
        A("s_bfe_u32 s63, s2, 0x20001"); A("s_andn2_b32 s32, 1, s2"); A("s_lshl2_add_u32 s63, s32, s63"); A("s_bfe_u32 s32, s2, 0x20003"); A("s_lshl2_add_u32 s63, s63, s32")
    else:
        A("s_and_b32 s63, s2, 7"); A("s_lshl_b32 s63, s63, 2"); A("s_bfe_u32 s32, s2, 0x20003"); A("s_add_u32 s63, s63, s32")
    if o.hmap == "lo": A("s_and_b32 s31, s2, 31")
    else: A("s_mov_b32 s31, s63")
    A("s_mov_b32 s35, 0x20000"); A("s_mov_b32 s39, 0x20000")
    A(f"s_mov_b32 s93, {o.spin}")
    A("s_cmp_lt_u32 s3, 4"); A("s_cbranch_scc1 L_f")
    A("; ---- KV waves: clear the LDS counter word, start the K stream (1 KiB = 4 keys per load)")
    A("v_mov_b32 v8, 0"); A(f"ds_write_b32 v8, v8 offset:{L_CNT}")
    A("s_sub_u32 s3, s3, 4")
    if o.karg == 2:
        A("s_cmp_lg_u32 s3, 0"); A("s_cbranch_scc1 L_nk"); A("s_load_dword s20, s[0:1], 64"); A("L_nk:")
    if o.pat == "wis":
        A("s_lshl_b32 s52, s30, 16"); A("s_lshl_b32 s53, s31, 21"); A("s_add_u32 s52, s52, s53"); A("s_add_u32 s52, s52, 0x180000")
        A("v_lshl_add_u32 v1, v0, 4, s52")
        A("s_lshl_b32 s54, s30, 1"); A("s_add_u32 s54, s54, s31"); A("s_lshl_b32 s54, s54, 2"); A("s_add_u32 s54, s54, s3"); A("s_lshl_b32 s54, s54, 10")
        A("s_mov_b32 s55, 0xffff"); A("s_movk_i32 s56, 0x2000")
        A("s_and_b32 s54, s54, s55")
        if o.order != "K"*8 + "V"*8: A("s_mov_b32 s53, s54")
    else:
        A("s_lshl_b32 s52, s31, 21"); A("s_add_u32 s52, s52, 0x180000")
        A("v_lshl_add_u32 v1, v0, 4, s52")
        A("s_lshl_b32 s53, s30, 3"); A("s_add_u32 s53, s53, s3"); A("s_lshl_b32 s53, s53, 10")
        A("s_mov_b32 s55, 0xffff"); A(f"s_movk_i32 s56, {o.pstep}")
        if o.hrot: A("s_and_b32 s58, s31, 7"); A("s_lshl_b32 s58, s58, 16")
        else: A("s_mov_b32 s58, 0")
        A("s_add_u32 s54, s53, s58"); A("s_mov_b32 s59, s53")
    A("s_mov_b32 s34, 0x4000000"); A("s_mov_b32 s38, 0x4000000")
    A("s_waitcnt lgkmcnt(0)")
    stamp(1)
    A("s_mov_b32 s32, s6"); A("s_and_b32 s33, s7, s55"); A("s_mov_b32 s36, s8"); A("s_and_b32 s37, s9, s55")
    depths = [c if c in "hij" else int(c, 16) for c in o.depths]
    def kvload(n):
        m = "KV".index(o.order[n]); i = o.order[:n].count(o.order[n])
        r = 32 + 32*m + 4*i
        so = "s54" if (m == 0 or o.order == "K"*8 + "V"*8) else "s53"
        if o.pace and int(o.pace[n], 36): A(f"s_sleep {int(o.pace[n], 36)}")
        if depths[n] == "j":
            A("s_waitcnt vmcnt(3)"); A("s_cmp_eq_u32 s30, 3"); A(f"s_cbranch_scc1 L_d{n}"); A("s_waitcnt vmcnt(2)"); A(f"L_d{n}:")
        elif depths[n] in ("h", "i"):
            lo = 2 if depths[n] == "h" else 3
            A(f"s_waitcnt vmcnt({lo})"); A("s_bitcmp1_b32 s3, 2"); A(f"s_cbranch_scc0 L_d{n}"); A(f"s_waitcnt vmcnt({lo-1})"); A(f"L_d{n}:")
        elif depths[n] and n >= depths[n]: A(f"s_waitcnt vmcnt({depths[n]-1})")
        A(f"buffer_load_dwordx4 v[{r}:{r+3}], v1, s[{32+4*m}:{35+4*m}], {so} offen {'nt' if o.pol[n] == 'n' else ''}")
        if n < 15 and o.pat == "wis":
            A(f"s_add_u32 {so}, {so}, s56"); A(f"s_and_b32 {so}, {so}, s55")
        elif n < 15:
            if n == 7: A("s_mov_b32 s53, s59")
            else: A("s_add_u32 s53, s53, s56"); A("s_and_b32 s53, s53, s55")
            if o.hrot:
                A("s_add_u32 s58, s58, 0x10000"); A("s_and_b32 s58, s58, 0x7ffff"); A("s_add_u32 s54, s53, s58")
            else: A(f"s_add_u32 s54, s53, {((n+1) % 8) << 16:#x}")
        if n == 7: stamp(8)
    for n in range(o.n0): kvload(n)
    A("s_barrier")
    for n in range(o.n0, o.n1): kvload(n)
    if o.warm:
        A("s_mov_b64 exec, 0")
        for w in range(NPAD):
            A(f"s_cmp_eq_u32 s3, {w}"); A(f"s_cbranch_scc1 PAD{w}")
        A("L_back:")
        A("s_mov_b64 exec, -1")
    A("s_branch L_kv")

    A("L_f:")
    A("v_lshrrev_b32 v9, 3, v0"); A("v_and_b32 v10, 7, v0")
    A("s_min_u32 s46, s63, 12"); A("s_mul_i32 s47, s63, 5"); A("s_add_u32 s46, s46, s47")
    A("s_cmp_lt_u32 s63, 12"); A("s_cselect_b32 s47, 6, 5")
    A("s_lshl_b32 s52, s31, 8"); A("s_lshl_b32 s53, s3, 7"); A("s_add_u32 s52, s52, s53")
    A("s_lshl_b32 s53, s46, 4")
    A("s_cmp_lt_u32 s3, 2")
    A("s_cselect_b32 s52, s52, s53"); A("s_movk_i32 s53, 2752"); A("s_cselect_b32 s53, 0x2000, s53")
    A("s_cselect_b32 s54, 8, s47")
    A("s_mov_b32 s34, 1409024"); A("s_cselect_b32 s34, 0x400000, s34")
    A("s_lshl_b32 s55, s30, 3")
    A("v_add_u32 v1, s55, v9"); A("v_lshlrev_b32 v2, 4, v1")
    A("v_lshlrev_b32 v1, 3, v1"); A("v_mul_lo_u32 v1, v1, s53")
    A("v_cmp_gt_u32 vcc, s54, v10")
    A("v_lshl_add_u32 v1, v10, 4, v1"); A("v_add_u32 v1, s52, v1")
    A("v_mov_b32 v3, 0x40000000"); A("v_cndmask_b32 v1, v3, v1, vcc")
    A("s_mov_b32 s55, 0")
    A("s_waitcnt lgkmcnt(0)")
    stamp(1)
    if o.nox: A("buffer_load_dwordx4 v[12:15], v3, s[32:35], 0 offen") if False else A("s_nop 0")
    else: A("global_load_dwordx4 v[12:15], v2, s[4:5]")
    A("s_cmp_eq_u32 s3, 2"); A("s_cselect_b64 s[32:33], s[16:17], s[18:19]")
    A("s_cmp_lt_u32 s3, 2"); A("s_cselect_b64 s[32:33], s[10:11], s[32:33]")
    if o.gulate:
        A("s_cbranch_scc1 L_f_q0"); A("s_barrier"); A("L_f_q0:")
    A("s_and_b32 s33, s33, 0xffff")
    if o.nof == 1: A("v_mov_b32 v1, v3")
    if o.nof == 2:
        A("s_cmp_lt_u32 s3, 2"); A("s_cbranch_scc1 L_kp"); A("v_mov_b32 v1, v3"); A("L_kp:")
    if o.nof == 3:
        A("s_cmp_ge_u32 s3, 2"); A("s_cbranch_scc1 L_kp"); A("v_mov_b32 v1, v3"); A("L_kp:")
    if o.nof == 4:
        A("s_lshl_b32 s60, s2, 1"); A("s_and_b32 s61, s3, 1"); A("s_add_u32 s60, s60, s61"); A("s_cmp_lt_u32 s3, 2"); A("s_cselect_b32 s60, s60, s2"); A("s_movk_i32 s61, 5504"); A("s_cselect_b32 s61, 0x2000, s61")
        A("s_mul_i32 s60, s60, s61"); A("v_lshl_add_u32 v1, v0, 4, s60"); A("s_movk_i32 s53, 688"); A("s_cselect_b32 s53, 0x400, s53")
        A("s_cselect_b32 s61, 64, 43"); A("v_cmp_gt_u32 vcc, s61, v0"); A("v_cndmask_b32 v1, v3, v1, vcc")
    def fload(i):
        A(f"buffer_load_dwordx4 v[{16+4*i}:{19+4*i}], v1, s[32:35], s55 offen {o.ldf}")
        if i < 7: A("s_add_u32 s55, s55, s53")
    if o.gu:
        (ga, gb), (ua, ub) = [tuple(map(int, t.split(","))) for t in o.gu.split("/")]
        A("s_cmp_lt_u32 s3, 2"); A("s_cbranch_scc0 L_f_gu")
        for i in range(8): fload(i)
        A("s_barrier")
        A("s_branch L_f_ld")
        A("L_f_gu:")
        if (ga, gb) != (ua, ub):
            A("s_cmp_eq_u32 s3, 2"); A("s_cbranch_scc0 L_f_up")
        for nm, a, b in (("g", ga, gb), ("u", ua, ub)):
            if nm == "u":
                if (ga, gb) == (ua, ub): break
                A("s_branch L_f_ld"); A("L_f_up:")
            for i in range(a): fload(i)
            A("s_barrier")
            for i in range(a, 8):
                if i == a and a < b: A("s_waitcnt vmcnt(%d)" % a)
                elif i >= b: A(f"s_waitcnt vmcnt({b-1})")
                fload(i)
        A("L_f_ld:")
    else:
        for i in range(8): fload(i)
        if o.gulate:
            A("s_cmp_lt_u32 s3, 2"); A("s_cbranch_scc0 L_f_q1"); A("s_barrier"); A("L_f_q1:")
        else:
            A("s_barrier")
    wssrd()
    A("s_mov_b32 s36, s20"); A("s_and_b32 s37, s21, 0xffff"); A("s_mov_b32 s38, 1409024")
    A(f"s_cmp_lg_u32 s3, {7 if o.nox else 3}"); A("s_cbranch_scc1 L_f_nog1")
    A("v_lshlrev_b32 v2, 4, v0")
    A("global_load_dwordx4 v[84:87], v2, s[4:5]")
    A("global_load_dwordx4 v[88:91], v2, s[22:23]")
    if o.touchout >= 3:
        A("s_lshl_b32 s60, s30, 7"); A("v_mov_b32 v93, s60"); A(f"global_load_dword v93, v93, s[24:25] {'nt' if o.touchout == 4 else ''}")
    A("L_f_nog1:")
    masks()
    A("v_mov_b32 v8, 0xff"); A("v_mov_b32 v92, 0")
    spot()
    A("s_mov_b32 s44, 0x0c0c0400"); A("s_mov_b32 s45, 0x04000c0c")
    A("s_and_b32 s62, s2, 31")
    A("s_lshl_b32 s56, s62, 2"); A("s_add_u32 s56, s56, s3"); A("s_lshl_b32 s56, s56, 11"); A(f"s_add_u32 s56, s56, {H0BASE}")
    A("s_lshl_b32 s57, s30, 4"); A("s_add_u32 s57, s57, s56")
    A("v_lshrrev_b32 v1, 4, v0"); A("v_lshl_add_u32 v1, v10, 1, v1"); A("v_lshlrev_b32 v1, 7, v1")
    A("v_lshlrev_b32 v2, 4, v0")
    if o.pretouch & 8:
        A("s_cmp_lg_u32 s3, 2"); A("s_cbranch_scc1 L_f_nopt")
        A("s_lshl_b32 s60, s62, 13"); A("s_lshl_b32 s61, s30, 10"); A("s_add_u32 s60, s60, s61"); A(f"s_add_u32 s60, s60, {H0BASE}")
        A(f"s_mul_i32 s61, s62, {H1STR}"); A("s_lshl_b32 s58, s30, 9"); A("s_add_u32 s61, s61, s58"); A(f"s_add_u32 s61, s61, {H1BASE - 1024}")
        A("v_mov_b32 v84, s60"); A("v_mov_b32 v85, s61"); A("v_cmp_gt_u32 vcc, 8, v0"); A("v_cndmask_b32 v84, v85, v84, vcc")
        A("v_lshl_add_u32 v84, v0, 7, v84")
        A("s_mov_b64 exec, 0x1fff")
        A("buffer_load_dword v85, v84, s[48:51], 0 offen sc1")
        A("s_mov_b64 exec, -1")
        A("L_f_nopt:")
    A("s_mov_b32 s60, 0x01000100"); A("s_mov_b32 s61, 0x03020302")
    A("s_mov_b32 s59, 0")
    A("s_waitcnt vmcnt(8)")
    for i in range(8):
        A(f"v_perm_b32 v11, v{12+i//2}, v{12+i//2}, s{60+i%2}")
        for d in range(4): A(f"v_and_b32 v{48+4*i+d}, v11, v{4+d}")
    spot()
    A("s_waitcnt lgkmcnt(0)")
    A("; launch tag T = ws[0] + 0x01010101 (s94); the L2-local copies carry T with this XCD's id mixed in (s40..s43)")
    A("s_getreg_b32 s99, hwreg(HW_REG_XCC_ID, 0, 4)"); A("s_lshl_b32 s99, s99, 24")
    A("s_add_u32 s94, s40, 0x01010101"); A("s_xor_b32 s40, s94, s99")
    A("s_lshr_b32 s41, s40, 8"); A("s_lshr_b32 s42, s40, 16"); A("s_lshr_b32 s43, s40, 24")
    if o.atom:
        A("; output accumulators {f64 sum, f64 count}: eight waves initialise them to {0, 64 T}")
        A("v_cvt_f64_u32 v[94:95], s94"); A("v_ldexp_f64 v[94:95], v[94:95], 6")
        A(f"s_lshl_b32 s96, s30, {o.apad + 3}"); A("s_and_b32 s60, s3, 1"); A(f"s_lshl_b32 s60, s60, {o.apad + 2}"); A("s_add_u32 s96, s96, s60"); A(f"s_add_u32 s96, s96, {H2BASE}")
        A("v_readfirstlane_b32 s90, v94"); A("v_readfirstlane_b32 s91, v95")
        A("s_cmp_lg_u32 s62, s30"); A("s_cbranch_scc1 L_f_noinit")
        A("s_cmp_lg_u32 s3, 2"); A("s_cbranch_scc1 L_f_noinit")
        A("v_mov_b32 v93, 0")
        A("v_lshlrev_b32 v11, 4, v10"); A(f"v_lshl_add_u32 v11, v9, {o.apad}, v11")
        A("buffer_store_dwordx4 v[92:95], v11, s[48:51], s96 offen sc1")
        A("s_waitcnt vmcnt(1)"); A("s_branch L_f_init")
        A("L_f_noinit:")
        A("s_waitcnt vmcnt(0)")
        A("L_f_init:")
    else:
        A("s_waitcnt vmcnt(0)")
    stamp(2)
    for i in range(8):
        A(f"v_mfma_f32_16x16x32_bf16 v[80:83], v[{48+4*i}:{51+4*i}], v[{16+4*i}:{19+4*i}], " + ("0" if i == 0 else "v[80:83]"))
    for i in range(4): A(f"v_permlane32_swap_b32 v{80+i}, v{12+i}")
    for i in range(4): A(f"v_add_f32_dpp v{80+i}, v{12+i}, v{80+i} row_ror:8 {DP}")
    tagq(80)
    if o.gtrim:
        A("s_cmp_lt_u32 s3, 2"); A("s_mov_b32 s98, 0x003f003f"); A("s_cselect_b32 s98, 0x00ff00ff, s98"); A("s_cselect_b32 s95, -1, 0")
        A("s_mov_b32 exec_lo, s98"); A("s_mov_b32 exec_hi, 0")
    else: A("s_mov_b64 exec, 0x00ff00ff")
    pubL("v[80:83]", "v1", "s57")
    A("s_mov_b64 exec, -1")
    stamp(3)
    spot()
    A("s_cmp_lg_u32 s3, 3"); A("s_cbranch_scc1 L_f_nog2")
    for i in range(4):
        A(f"v_lshlrev_b32 v16, 16, v{84+i}"); A(f"v_and_b32 v17, 0xffff0000, v{84+i}")
        A(f"v_lshlrev_b32 v18, 16, v{88+i}"); A(f"v_and_b32 v19, 0xffff0000, v{88+i}")
        A("v_mul_f32 v16, v16, v18"); A("v_mul_f32 v17, v17, v19")
        A("v_cvt_pk_bf16_f32 v16, v16, v17")
        A("v_lshlrev_b32 v17, 16, v16"); A("v_and_b32 v16, 0xffff0000, v16")
        if i == 0: A("v_add_f32 v20, v16, v17")
        else: A("v_add_f32 v20, v20, v16"); A("v_add_f32 v20, v20, v17")
    spot()
    red8("v_add_f32", [20])
    A(f"v_add_f32_dpp v20, v20, v20 row_ror:8 {DP}")
    A("v_add_f32_dpp v20, v20, v20 row_bcast:15 row_mask:0xa bank_mask:0xf")
    A("v_add_f32_dpp v20, v20, v20 row_bcast:31 row_mask:0xc bank_mask:0xf")
    A("v_cvt_pk_bf16_f32 v20, v20, v20"); A("v_and_b32 v20, 0xffff0000, v20")
    A("v_mul_f32 v20, 0xbfb8aa3b, v20"); A("v_exp_f32 v20, v20"); A("v_add_f32 v20, 1.0, v20"); A("v_rcp_f32 v20, v20")
    A("v_cvt_pk_bf16_f32 v20, v20, v20"); A("v_and_b32 v20, 0xffff0000, v20")
    A("v_sub_f32 v21, 1.0, v20"); A("v_cvt_pk_bf16_f32 v21, v21, v21"); A("v_and_b32 v21, 0xffff0000, v21")
    A("s_bfm_b64 exec, 1, 63")
    A(f"ds_write_b64 v92, v[20:21] offset:{L_G}")
    A("s_mov_b64 exec, -1")
    A("L_f_nog2:")
    spot()
    if o.wait_pub == 1: A("s_waitcnt vmcnt(0)")
    if o.sleep0: A(f"s_sleep {o.sleep0}")
    if not o.atom: stamp(4)
    if o.gtrim:
        for r in range(20, 24): A(f"v_mov_b32 v{r}, 0")
    A(f"s_mov_b32 s58, {o.nl}"); A("s_mov_b32 s92, s40")
    A("L_p0:")
    A("s_sub_u32 s58, s58, 1"); A("s_cbranch_scc1 L_p0_to")
    A("L_p0_ld:")
    if not o.nohand:
        A("buffer_load_dwordx4 v[16:19], v2, s[48:51], s56 offen sc1")
        if o.gtrim: A("s_mov_b32 exec_hi, s95")
        A("buffer_load_dwordx4 v[20:23], v2, s[48:51], s56 offen offset:1024 sc1")
        if o.gtrim: A("s_mov_b32 exec_hi, -1")
    A("s_waitcnt vmcnt(0)")
    chk(16, 24); chk(20, 26)
    A("v_cmp_eq_u32 vcc, s92, v24"); A("v_cmp_eq_u32 s[60:61], s92, v26")
    if o.gtrim: A("s_orn2_b32 s61, s61, s95")
    A("s_and_b64 vcc, vcc, s[60:61]")
    A("s_cmp_eq_u64 vcc, exec"); A("s_nop 0" if o.nohand else "s_cbranch_scc0 L_p0")
    stamp(5)
    if o.clean & 1:
        A("s_lshl_b32 s60, s30, 3"); A("s_bfm_b64 exec, 8, s60")
        A("buffer_store_dwordx4 v[16:19], v2, s[48:51], s56 offen sc1")
        A("buffer_store_dwordx4 v[20:23], v2, s[48:51], s56 offen offset:1024 sc1")
        A("s_mov_b64 exec, -1")
    for r in range(16, 24): A(f"v_and_b32 v{r}, 0xffffff00, v{r}")
    spot()
    red8("v_add_f32", list(range(16, 24)))
    A("v_cvt_pk_bf16_f32 v16, v16, v17"); A("v_cvt_pk_bf16_f32 v17, v18, v19")
    A("v_cvt_pk_bf16_f32 v18, v20, v21"); A("v_cvt_pk_bf16_f32 v19, v22, v23")
    A("s_lshl_b32 s55, s3, 7"); A("v_lshl_add_u32 v1, v9, 3, s55")
    A("ds_write_b64 v1, v[16:17]"); A("ds_write_b64 v1, v[18:19] offset:64")
    if o.kvpub: A("v_mov_b32 v1, s40"); A(f"ds_write_b32 v92, v1 offset:{L_T}")
    A("s_cmp_lt_u32 s3, 2"); A(f"s_cselect_b32 s55, {C_Q}, {C_G}")
    cnt_add("v92", "v1", "s55")
    spot()
    if o.xdirty:
        A("s_lshl_b32 s60, s2, 2"); A("s_add_u32 s60, s60, s3"); A("s_lshl_b32 s60, s60, 9"); A(f"s_add_u32 s60, s60, {GOFF}")
        A("s_mov_b32 exec_hi, 0"); A("buffer_store_dwordx4 v[80:83], v2, s[48:51], s60 offen"); A("s_mov_b32 exec_hi, -1")
    if o.wb == 1:
        A("s_add_u32 s60, s3, s30"); A("s_cmp_lg_u32 s60, 0"); A("s_cbranch_scc1 L_nowb"); A("s_cmp_ge_u32 s2, 8"); A("s_cbranch_scc1 L_nowb")
        A("buffer_wbl2 sc1")
        A("L_nowb:")
    A(f"s_mul_i32 s52, s62, {H1STR}"); A(f"s_add_u32 s52, s52, {H1BASE}"); A("s_lshl_b32 s53, s3, 10"); A("s_add_u32 s53, s53, s52")
    A("s_lshl_b32 s97, s30, 4"); A("s_add_u32 s54, s97, s53"); A("s_add_u32 s52, s52, 4096"); A("s_add_u32 s97, s97, s52")
    A("v_lshlrev_b32 v13, 4, v10"); A("v_lshlrev_b32 v14, 7, v9"); A("v_lshlrev_b32 v12, 4, v0")
    if o.ptl >= 2: A("v_mov_b32 v3, 0x40000000")
    if not o.atom:
        A("s_lshl_b32 s60, s30, 14"); A("s_lshl_b32 s61, s62, 9"); A("s_add_u32 s96, s60, s61"); A(f"s_add_u32 s96, s96, {H2BASE}")
    else:
        A("v_and_b32 v47, 15, v0"); A("v_lshlrev_b32 v47, 3, v47"); A("v_lshrrev_b32 v46, 4, v0"); A(f"v_lshl_add_u32 v47, v46, {o.apad}, v47")
        A("s_cmp_ge_u32 s3, 2"); A("s_cbranch_scc1 L_f_noai")
        if o.touchout in (1, 2):
            A("s_lshl_b32 s60, s30, 7"); A("v_mov_b32 v15, s60"); A(f"global_load_dword v88, v15, s[24:25] {'nt' if o.touchout == 2 else ''}")
        A("buffer_load_dwordx2 v[94:95], v47, s[48:51], s96 offen sc1")
        A("L_f_noai:")
    if o.pretouch & 2 and o.ptl:
        A("; bring the hand-off 1 lines into L2 before they are written: one line per wave (and the statistics line)")
        A("s_lshl_b32 s60, s30, 3"); A("s_bfm_b64 exec, 1, s60")
        A("buffer_load_dword v84, v12, s[48:51], s53 offen sc1" if o.ptl < 3 else "buffer_load_dword v84, v3, s[48:51], 0 offen")
        A("buffer_load_dword v88, v13, s[48:51], s52 offen sc1" if o.ptl < 2 else "buffer_load_dword v88, v3, s[48:51], 0 offen")
        A("s_mov_b64 exec, -1")
    elif o.pretouch & 2:
        A("buffer_load_dwordx4 v[84:87], v12, s[48:51], s53 offen sc1")
        A("buffer_load_dwordx4 v[88:91], v13, s[48:51], s52 offen sc1")
    spot()
    A("s_mov_b32 s32, s12"); A("s_and_b32 s33, s13, 0xffff"); A("s_mov_b32 s34, 0x400000")
    A("s_lshl_b32 s55, s31, 17"); A("s_lshl_b32 s56, s3, 15"); A("s_add_u32 s55, s55, s56"); A("s_lshl_b32 s56, s30, 7"); A("s_add_u32 s55, s55, s56")
    A("v_lshl_add_u32 v1, v9, 12, v13")
    A("v_lshl_add_u32 v2, v9, 10, v13")
    A("s_add_u32 s57, s46, s3"); A("s_lshl_b32 s57, s57, 13"); A("s_add_u32 s56, s56, s57")
    A("s_add_u32 s57, s3, 4"); A("s_cmp_lt_u32 s57, s47"); A("s_mov_b32 s57, 0x40000000"); A("s_cselect_b32 s57, 0x8000, s57"); A("v_add_u32 v56, s57, v2")
    A("s_lshl_b32 s57, s3, 4"); A("v_lshl_add_u32 v3, v9, 1, s57")
    if o.fakewo:
        A("s_lshl_b32 s55, s31, 17"); A("s_lshl_b32 s57, s30, 14"); A("s_add_u32 s55, s55, s57"); A("s_lshl_b32 s57, s3, 12"); A("s_add_u32 s55, s55, s57")
        A("v_lshlrev_b32 v1, 4, v0")
    spot()
    def late_wo(a, b):
        for i in range(a, b):
            if o.ilv:
                A(f"buffer_load_dwordx4 v[{24+4*i}:{27+4*i}], v1, s[32:35], s55 offen {ld}")
                if i < 3: A("s_addk_i32 s55, 0x400")
            else: A(f"buffer_load_dwordx4 v[{24+4*i}:{27+4*i}], v1, s[32:35], s55 offen offset:{1024*i} {ld}")
    def late():
        if o.x3 != o.xthr:
            A("s_cmp_eq_u32 s30, 3"); A(f"s_cselect_b32 s57, {o.x3}, {o.xthr}")
            cnt_wait("wx", "v92", "v15", 4, "s57")
        else: cnt_wait("wx", "v92", "v15", 4, o.xthr)
        stamp(6)
        if o.early == 1: A("buffer_load_dwordx4 v[72:75], v13, s[48:51], s52 offen sc1")
        A(f"buffer_load_dwordx4 v[16:19], v2, s[36:39], s56 offen {ld}")
        if o.ilv: A("s_mov_b32 s88, 0xaaaaaaaa")
        A(f"buffer_load_dwordx4 v[20:23], v56, s[36:39], s56 offen {ld}")
        if o.ilv: A("s_mov_b32 s89, 0xaaaaaaaa")
        late_wo(o.prewo, 4 - o.lmfirst - o.post)
    lpos = 2 if (o.nq < 16 or o.xw < 8) else (1 if o.skipwd else 0)
    if o.prewo and o.prepos == 0: late_wo(0, o.prewo)
    if lpos == 0: late()
    def rd_gu():
        A("ds_read_u16 v40, v3 offset:256"); A("ds_read_u16 v41, v3 offset:384")
        A("ds_read_u16 v42, v3 offset:320"); A("ds_read_u16 v43, v3 offset:448")
        A(f"ds_read_b64 v[44:45], v92 offset:{L_G}")
    cnt_wait("wg", "v92", "v15", 8, 2, rd_gu)
    spot()
    for t in range(2):
        A(f"v_lshlrev_b32 v{40+2*t}, 16, v{40+2*t}"); A(f"v_lshlrev_b32 v{41+2*t}, 16, v{41+2*t}")
        A(f"v_max_f32 v{40+2*t}, 0, v{40+2*t}"); A(f"v_mul_f32 v{40+2*t}, v{40+2*t}, v{41+2*t}")
        A(f"v_cvt_pk_bf16_f32 v{40+2*t}, v{40+2*t}, v{40+2*t}")
        if o.skipwd:
            va = "v2" if t == 0 else "v56"
            A(f"v_and_b32 v{41+2*t}, 0x7fff, v{40+2*t}"); A(f"v_cmp_ne_u32 vcc, 0, v{41+2*t}"); A(f"v_mov_b32 v{41+2*t}, 0x40000000"); A(f"v_cndmask_b32 {va}, v{41+2*t}, {va}, vcc")
        for d in range(4): A(f"v_and_b32 v{48+4*t+d}, v{40+2*t}, v{4+d}")
    if lpos == 1: late()
    A(f"v_mul_u32_u24 v46, {PSTR}, v10"); A("v_lshl_add_u32 v46, v9, 4, v46"); A("s_lshl_b32 s57, s3, 7"); A("v_add_u32 v46, s57, v46")
    A("v_bfe_u32 v3, v0, 4, 1"); A("v_lshl_add_u32 v3, v10, 1, v3"); A("v_lshlrev_b32 v3, 4, v3")
    A("v_lshrrev_b32 v11, 5, v0"); A("v_lshl_add_u32 v3, v11, 8, v3"); A("s_lshl_b32 s57, s3, 9"); A("v_add_u32 v3, s57, v3")
    if not o.atom: A("v_lshlrev_b32 v47, 3, v0")
    A("v_lshlrev_b32 v11, 3, v10")
    def acc_check():
        A("; the accumulators must carry this launch's count base before anything is added")
        A("s_cmp_ge_u32 s3, 2"); A("s_cbranch_scc1 L_f_aok")
        if lpos == 2 and not o.pretouch & 2:
            A(f"s_waitcnt vmcnt({7 - o.post})"); A("s_cmp_eq_u32 s3, 0"); A("s_cbranch_scc1 L_f_achk"); A(f"s_waitcnt vmcnt({6 - o.post})")
        else: A(f"s_waitcnt vmcnt({6 - o.lmfirst - o.post})" if lpos < 2 else f"s_waitcnt vmcnt({7 - o.post + min(o.early, 1)})")
        A("L_f_achk:")
        A("v_add_f64 v[94:95], v[94:95], -s[90:91]")
        A("s_mov_b32 s60, 0"); A("s_mov_b32 s61, 0x40400000")
        A("v_cmp_le_f64 vcc, 0, v[94:95]"); A("v_cmp_gt_f64 s[60:61], s[60:61], v[94:95]"); A("s_and_b64 vcc, vcc, s[60:61]")
        A("s_or_b32 vcc_lo, vcc_lo, 0x55555555"); A("s_or_b32 vcc_hi, vcc_hi, 0x55555555")
        A("s_cmp_eq_u64 vcc, exec"); A("s_cbranch_scc1 L_f_aok")
        A("s_sub_u32 s93, s93, 1"); A("s_cbranch_scc1 L_end")
        A("buffer_load_dwordx2 v[94:95], v47, s[48:51], s96 offen sc1")
        A("s_waitcnt vmcnt(0)"); A("s_branch L_f_achk")
        A("L_f_aok:")
        A("v_lshrrev_b32 v95, 1, v0"); A("s_lshl_b32 s60, s3, 5"); A("v_add_u32 v95, s60, v95")
        A("v_and_b32 v94, 1, v0"); A("v_lshlrev_b32 v94, 10, v94"); A("v_lshl_add_u32 v94, v95, 2, v94")
        A("s_lshl_b32 s60, s30, 7"); A("v_lshl_add_u32 v95, v95, 1, s60")
        A("s_mov_b32 s60, 0"); A("s_mov_b32 s61, 0x403f0000")
        A("v_mov_b32 v58, s60"); A("v_mov_b32 v59, s61"); A("v_add_f64 v[58:59], v[58:59], s[90:91]")
        A("v_readfirstlane_b32 s90, v58"); A("v_readfirstlane_b32 s91, v59")
        if not o.ilv: A("s_mov_b32 s88, 0xaaaaaaaa"); A("s_mov_b32 s89, 0xaaaaaaaa")
    if o.atom and lpos < 2: acc_check()
    A(f"s_cmp_eq_u32 s59, 0"); A(f"s_cselect_b32 s58, {o.nl}, 0"); A("s_mov_b32 s59, 0"); A("s_mov_b32 s92, s40")
    A("s_not_b32 s95, s94")
    spot()
    cnt_wait("wm", "v92", "v15", 12, 8, lambda: A(f"ds_read_b64 v[76:77], v11 offset:{L_LM}"))
    stamp(7)
    if o.prewo and o.prepos == 1: late_wo(0, o.prewo)
    if o.early == 2: A("buffer_load_dwordx4 v[72:75], v13, s[48:51], s52 offen sc1")
    A("v_mov_b32 v93, v77")
    red8("v_max_f32", [77])
    A("v_sub_f32 v93, v93, v77"); A("v_mul_f32 v93, 0x3fb8aa3b, v93"); A("v_exp_f32 v93, v93")
    A("v_mov_b32 v78, 0"); A("v_mul_f32 v76, v76, v93"); A("v_mov_b32 v79, 0")
    red8("v_add_f32", [76])
    tagq(76)
    A("s_cmp_lg_u32 s3, 0"); A("s_cbranch_scc1 L_f_nolm")
    if o.kvpub: A("v_lshrrev_b32 v11, 1, v11"); A(f"ds_write_b32 v11, v93 offset:{L_F}")
    A("s_mov_b64 exec, 1")
    pubL("v[76:79]", "v92", "s97")
    A("s_mov_b64 exec, -1")
    A("L_f_nolm:")
    late_wo(4 - o.lmfirst, 4)
    if lpos == 2:
        assert not o.lmfirst
        late()
        if o.atom: acc_check()
    def lmchk():
        chk(72, 42)
        A("v_cmp_eq_u32 vcc, s92, v42")
        A("v_and_b32 v73, 0xffff0000, v73")
        A("s_cmp_eq_u64 vcc, exec")
    def weights():
        A("v_and_b32 v72, 0xffffff00, v72")
        A(f"v_max_f32_dpp v74, v73, v73 quad_perm:[1,0,3,2] {DP}")
        A(f"v_max_f32_dpp v74, v74, v74 quad_perm:[2,3,0,1] {DP}")
        A(f"v_max_f32_dpp v74, v74, v74 row_half_mirror {DP}")
        A("v_sub_f32 v73, v73, v74"); A("v_mul_f32 v73, 0x3fb8aa3b, v73"); A("v_exp_f32 v73, v73")
        A("v_mul_f32 v72, v73, v72"); A("v_mul_f32 v73, v44, v73")
        red8("v_add_f32", [72])
        A("v_rcp_f32 v72, v72"); A("v_mul_f32 v43, v73, v72")
    def chk64(r):
        A(f"v_perm_b32 v40, v{r+1}, v{r}, s44"); A(f"v_perm_b32 v41, v{r+3}, v{r+2}, s44")
        A("v_cmp_eq_u64 vcc, s[60:61], v[40:41]"); A("s_cmp_eq_u64 vcc, exec")
    assert o.pipe and o.trim and not o.post and not o.lmonly and o.pretouch & 2 and lpos == 2
    if o.ptrim:
        A("v_and_b32 v1, 4, v0"); A("v_lshl_add_u32 v14, v1, 1, v14"); A("v_lshlrev_b32 v1, 2, v1")
        A("v_lshrrev_b32 v56, v1, s40"); A("v_lshrrev_b32 v57, v1, s41")
    if o.early:
        A("; the head's {sum, max} may be complete already: then the weights are ready before the partial outputs")
        if o.early == 2:
            A("v_cmp_eq_u32 vcc, s30, v10")
            A("s_waitcnt vmcnt(7)"); A("s_cmp_eq_u32 s3, 0"); A("s_cbranch_scc1 L_f_e0"); A("s_waitcnt vmcnt(6)"); A("L_f_e0:")
            for i in range(4): A(f"v_cndmask_b32 v{72+i}, v{72+i}, v{76+i}, vcc")
        else: A("s_waitcnt vmcnt(6)")
        lmchk(); A("s_cselect_b32 s57, 1, 0"); A("s_cbranch_scc0 L_f_now")
        weights()
        A("L_f_now:")
    if o.kvpub:
        assert not o.ptrim and not o.nohand
        A("s_and_b32 s60, s92, 0xffff"); A("s_lshr_b32 s61, s92, 16")
        A("s_barrier")
        stamp(8)
        stamp(11)
        A("buffer_load_dwordx4 v[72:75], v13, s[48:51], s52 offen sc1")
        A("s_waitcnt vmcnt(5)")
        A("v_mfma_f32_16x16x32_bf16 v[80:83], v[48:51], v[16:19], 0")
        A("v_mfma_f32_16x16x32_bf16 v[80:83], v[52:55], v[20:23], v[80:83]")
        for i in range(4): A(f"v_mul_f32 v{80+i}, v45, v{80+i}")
        fa, fb = int(o.kf[0]), int(o.kf[1])
        A(f"s_waitcnt vmcnt({1 + fa})")
        A("buffer_load_dwordx4 v[68:71], v12, s[48:51], s53 offen sc1")
        A(f"s_waitcnt vmcnt({2 + fb})")
        if o.stamps == 3: assert fb == 0; stamp(20)
        if o.early:
            A("s_cmp_eq_u32 s57, 1"); A("s_cbranch_scc1 L_p1b")
        A("s_branch L_p1_c")
        A("L_p1:")
        A("s_sub_u32 s58, s58, 1"); A("s_cbranch_scc1 L_p1_to")
        A("L_p1_ld:")
        A("buffer_load_dwordx4 v[72:75], v13, s[48:51], s52 offen sc1")
        A("buffer_load_dwordx4 v[68:71], v12, s[48:51], s53 offen sc1")
        A("s_and_b32 s60, s92, 0xffff"); A("s_lshr_b32 s61, s92, 16")
        A("L_p1_c:")
        A("buffer_load_dwordx4 v[84:87], v12, s[48:51], s53 offen sc1")
        A("s_waitcnt vmcnt(2)")
        lmchk(); A("s_cbranch_scc0 L_p1")
        weights()
        A("s_branch L_p1b_w")
    else:
        A("s_barrier")
        A(f"ds_read_b128 v[64:67], v46 offset:{L_PART}")
        stamp(8)
        A("s_waitcnt lgkmcnt(0)")
        if o.ptrim:
            A("v_pk_mul_f32 v[64:65], v[64:65], v[92:93] op_sel:[0,1] op_sel_hi:[1,1]")
            A("v_pk_mul_f32 v[66:67], v[66:67], v[92:93] op_sel:[0,1] op_sel_hi:[1,1]")
            for k in range(2): A(f"v_add_f32_dpp v{64+k}, v{64+k}, v{64+k} row_half_mirror row_mask:0xf bank_mask:0x5")
            for k in range(2): A(f"v_add_f32_dpp v{64+k}, v{66+k}, v{66+k} row_half_mirror row_mask:0xf bank_mask:0xa")
            for pat in ("quad_perm:[1,0,3,2]", "quad_perm:[2,3,0,1]"):
                for k in range(2): A(f"v_add_f32_dpp v{64+k}, v{64+k}, v{64+k} {pat} {DP}")
            A("v_bfi_b32 v64, v8, v56, v64"); A("v_bfi_b32 v65, v8, v57, v65")
            A("s_mov_b32 exec_lo, 0x11111111"); A("s_mov_b32 exec_hi, 0x11111111")
            if not o.nohand: A(f"buffer_store_dwordx2 v[64:65], v14, s[48:51], s54 offen {o.stl}")
        else:
            for i in range(4): A(f"v_mul_f32 v{64+i}, v93, v{64+i}")
            red8("v_add_f32", [64, 65, 66, 67])
            tagq(64)
            A("s_mov_b32 exec_lo, 0x01010101"); A("s_mov_b32 exec_hi, 0x01010101")
            pubL("v[64:67]", "v14", "s54")
        A("s_mov_b64 exec, -1")
        stamp(11)
        if o.nohand:
            A("s_waitcnt vmcnt(0)"); stamp(9); A("s_barrier"); stamp(10)
            A("s_cmp_lg_u32 s3, 0"); A("s_cbranch_scc1 L_end")
            dump(0, 12, "f"); A("s_endpgm")
        A("buffer_load_dwordx4 v[72:75], v13, s[48:51], s52 offen sc1")
        A("buffer_load_dwordx4 v[68:71], v12, s[48:51], s53 offen sc1")
        A(f"s_waitcnt vmcnt({7 - o.prewo})")
        A("v_mfma_f32_16x16x32_bf16 v[80:83], v[48:51], v[16:19], 0")
        A("v_mfma_f32_16x16x32_bf16 v[80:83], v[52:55], v[20:23], v[80:83]")
        A("s_and_b32 s60, s92, 0xffff"); A("s_lshr_b32 s61, s92, 16")
        for i in range(4): A(f"v_mul_f32 v{80+i}, v45, v{80+i}")
        if o.stamps == 3: A("s_waitcnt vmcnt(3)"); stamp(20)
        if o.fresh >= 0:
            A(f"s_waitcnt vmcnt({3 + o.fresh})")
            if o.early:
                A("s_cmp_eq_u32 s57, 1"); A("s_cbranch_scc1 L_p1b")
            A("s_branch L_p1_c")
            A("L_p1:")
            A("s_sub_u32 s58, s58, 1"); A("s_cbranch_scc1 L_p1_to")
            A("L_p1_ld:")
            A("buffer_load_dwordx4 v[72:75], v13, s[48:51], s52 offen sc1")
            A("buffer_load_dwordx4 v[68:71], v12, s[48:51], s53 offen sc1")
            A("s_and_b32 s60, s92, 0xffff"); A("s_lshr_b32 s61, s92, 16")
            A("L_p1_c:")
            A("buffer_load_dwordx4 v[84:87], v12, s[48:51], s53 offen sc1")
            A("s_waitcnt vmcnt(2)")
            lmchk(); A("s_cbranch_scc0 L_p1")
            weights()
            A("s_branch L_p1b_w")
        else:
            if o.early:
                A("s_cmp_eq_u32 s57, 1"); A("s_cbranch_scc1 L_p1b")
            A("s_branch L_p1_c")
            A("L_p1:")
            A("s_sub_u32 s58, s58, 1"); A("s_cbranch_scc1 L_p1_to")
            A("L_p1_ld:")
            A("buffer_load_dwordx4 v[72:75], v13, s[48:51], s52 offen sc1")
            A("buffer_load_dwordx4 v[68:71], v12, s[48:51], s53 offen sc1")
            A("s_and_b32 s60, s92, 0xffff"); A("s_lshr_b32 s61, s92, 16")
            A("L_p1_c:")
            A("s_waitcnt vmcnt(1)")
            lmchk(); A("s_cbranch_scc0 L_p1")
            weights()
    if True:
        A("L_p1b:")
        A("buffer_load_dwordx4 v[84:87], v12, s[48:51], s53 offen sc1")
        A("L_p1b_w:")
        A("s_waitcnt vmcnt(1)")
        chk64(68); A("s_cbranch_scc1 L_p1_okA")
        A("s_sub_u32 s58, s58, 1"); A("s_cbranch_scc1 L_p1_to")
        A("buffer_load_dwordx4 v[68:71], v12, s[48:51], s53 offen sc1")
        A("s_waitcnt vmcnt(1)")
        chk64(84); A("s_cbranch_scc0 L_p1b")
        for i in range(4): A(f"v_and_b32 v{88+i}, 0xffffff00, v{84+i}")
        A("s_branch L_p1_go")
        A("L_p1_okA:")
        for i in range(4): A(f"v_and_b32 v{88+i}, 0xffffff00, v{68+i}")
        A("L_p1_go:")
        stamp(9)
        R = 88
    else:
        A("s_branch L_p1b_c")
        A("L_p1b:")
        if o.p1sleep: A(f"s_sleep {o.p1sleep}")
        A("s_sub_u32 s58, s58, 1"); A("s_cbranch_scc1 L_p1_to")
        A("buffer_load_dwordx4 v[68:71], v12, s[48:51], s53 offen sc1")
        A("L_p1b_c:")
        A("s_waitcnt vmcnt(0)")
        chk(68, 40)
        A("v_cmp_eq_u32 vcc, s92, v40")
        for i in range(4): A(f"v_and_b32 v{68+i}, 0xffffff00, v{68+i}") if i < 2 else None
        A("s_cmp_eq_u64 vcc, exec"); A("s_cbranch_scc0 L_p1b")
        stamp(9)
        for i in range(2, 4): A(f"v_and_b32 v{68+i}, 0xffffff00, v{68+i}")
        R = 68
    if o.trim:
        A(f"v_pk_mul_f32 v[{R}:{R+1}], v[{R}:{R+1}], v[42:43] op_sel:[0,1] op_sel_hi:[1,1]")
        A(f"v_pk_mul_f32 v[{R+2}:{R+3}], v[{R+2}:{R+3}], v[42:43] op_sel:[0,1] op_sel_hi:[1,1]")
        for k in range(2): A(f"v_add_f32_dpp v{R+k}, v{R+k}, v{R+k} row_half_mirror row_mask:0xf bank_mask:0x5")
        for k in range(2): A(f"v_add_f32_dpp v{R+k}, v{R+2+k}, v{R+2+k} row_half_mirror row_mask:0xf bank_mask:0xa")
        for pat in ("quad_perm:[1,0,3,2]", "quad_perm:[2,3,0,1]"):
            for k in range(2): A(f"v_add_f32_dpp v{R+k}, v{R+k}, v{R+k} {pat} {DP}")
        for k in range(2): A(f"v_cvt_pk_bf16_f32 v{R+k}, v{R+k}, v{R+k}")
        def abuild(i):
            ds = (0, 1, 2, 3) if i < 2 else (2, 3, 0, 1)
            for d in ds:
                if d // 2 == i // 2: A(f"v_and_b32 v{48+4*i+d}, v{R+i%2}, v{4+d}")
                else: A(f"v_and_b32_dpp v{48+4*i+d}, v{R+i%2}, v{4+d} row_half_mirror {DP}")
    else:
        for i in range(4): A(f"v_mul_f32 v{R+i}, v73, v{R+i}")
        red8("v_add_f32", [R, R+1, R+2, R+3])
        for i in range(4): A(f"v_cvt_pk_bf16_f32 v{R+i}, v{R+i}, v{R+i}")
        def abuild(i):
            for d in range(4): A(f"v_and_b32 v{48+4*i+d}, v{R+i}, v{4+d}")
    for i in range(4):
        abuild(i)
        if i: A(f"v_mfma_f32_16x16x32_bf16 v[80:83], v[{44+4*i}:{47+4*i}], v[{20+4*i}:{23+4*i}], v[80:83]")
    A("v_mfma_f32_16x16x32_bf16 v[80:83], v[60:63], v[36:39], v[80:83]")
    if o.atom:
        A("s_mov_b32 exec_lo, 0x00ff00ff"); A("s_mov_b32 exec_hi, 0xff00ff00")
        A("s_cmp_ge_u32 s3, 2")
        spot()
        A(f"ds_write_b128 v3, v[80:83] offset:{L_Y}")
        A("s_mov_b64 exec, -1")
        A("s_waitcnt lgkmcnt(0)")
        A("s_barrier")
        stamp(21)
        A("s_cbranch_scc1 L_f_cl" if o.clean & 2 else ("s_cbranch_scc1 L_f_fin" if o.stamps == 3 else "s_cbranch_scc1 L_end"))
        A(f"ds_read2st64_b32 v[16:17], v94 offset0:{L_Y//256} offset1:{L_Y//256+1}")
        A(f"ds_read2st64_b32 v[18:19], v94 offset0:{L_Y//256+2} offset1:{L_Y//256+3}")
        A("s_waitcnt lgkmcnt(0)")
        A("v_pk_add_f32 v[16:17], v[16:17], v[18:19]"); A("v_add_f32 v16, v16, v17")
        A(f"v_add_f32_dpp v16, v16, v16 quad_perm:[1,0,3,2] {DP}")
        A("v_cndmask_b32 v16, v16, 1.0, s[88:89]")
        A("v_cvt_f64_f32 v[20:21], v16")
        A("buffer_atomic_add_f64 v[20:21], v47, s[48:51], s96 offen sc0 sc1")
        stamp(10)
        A("v_cvt_f64_f32 v[18:19], v16")
        if o.clean & 2:
            A("s_lshl_b32 s60, s30, 3"); A("s_bfm_b64 exec, 8, s60"); A("s_waitcnt vmcnt(1)")
            A("buffer_store_dwordx4 v[68:71], v12, s[48:51], s53 offen sc1")
            A("s_mov_b64 exec, -1")
        A("s_or_b32 s60, s30, s3")
        A("s_waitcnt vmcnt(1)" if o.clean & 2 else "s_waitcnt vmcnt(0)")
        A("v_add_f64 v[18:19], v[18:19], v[20:21]")
        A("v_cmp_eq_u64 vcc, s[90:91], v[20:21]")
        A("v_cvt_f32_f64 v16, v[18:19]")
        A("s_and_b64 vcc, vcc, s[88:89]")
        A("v_cvt_pk_bf16_f32 v16, v16, v16")
        A("s_lshr_b64 exec, vcc, 1"); A("L_nopad:")
        A("s_cbranch_execz L_f_nl")
        A(f"global_store_short v95, v16, s[24:25] {o.sto}")
        A("s_cmp_lg_u32 s60, 0"); A("s_cbranch_scc1 L_f_fin")
        A("s_and_b64 exec, exec, 1"); A("s_cbranch_execz L_f_fin")
        A("v_mov_b32 v16, s94")
        A(f"global_store_dword v92, v16, s[28:29] {o.sto}")
        if o.clean & 2:
            A("s_branch L_f_fin")
            A("L_f_cl:")
            A("s_lshl_b32 s60, s30, 3"); A("s_bfm_b64 exec, 8, s60"); A("s_waitcnt vmcnt(0)")
            A("buffer_store_dwordx4 v[68:71], v12, s[48:51], s53 offen sc1")
            A("s_add_u32 s60, s30, s3"); A("s_cmp_lg_u32 s60, 2"); A("s_cbranch_scc1 L_f_fin")
            A("s_mov_b64 exec, 1")
            A("buffer_store_dwordx4 v[76:79], v92, s[48:51], s97 offen sc1")
        if o.wb >= 2:
            A("s_branch L_f_fin")
            A("L_f_nl:")
            A("s_cmp_lg_u32 s60, 0"); A("s_cbranch_scc1 L_f_fin")
            A("s_mov_b64 exec, -1")
            A("v_add_f64 v[20:21], -v[20:21], s[90:91]"); A("v_cvt_u32_f64 v20, v[20:21]"); A("v_readlane_b32 s60, v20, 1")
            A(f"s_cmp_lt_u32 s60, {o.wb}"); A("s_cbranch_scc1 L_f_fin")
            A("buffer_wbl2 sc1")
        else: A("L_f_nl:")
        A("L_f_fin:")
        stamp(4)
        if o.stamps and o.stamps != 3:
            A("s_cmp_lg_u32 s3, 0"); A("s_cbranch_scc1 L_end")
    else:
        A("v_lshlrev_b32 v1, 4, v0")
        A("v_mov_b32 v58, s94"); A("v_mov_b32 v59, s95")
        A("s_mov_b32 exec_lo, 0x00ff00ff"); A("s_mov_b32 exec_hi, 0xff00ff00")
        A("s_cmp_lg_u32 s3, 0")
        spot()
        A(f"ds_write_b128 v3, v[80:83] offset:{L_Y}")
        A("s_mov_b32 exec_lo, -1"); A("s_mov_b32 exec_hi, 0")
        A("s_waitcnt lgkmcnt(0)")
        A("s_barrier")
        A("s_cbranch_scc1 L_end")
        for k in range(8): A(f"ds_read_b64 v[{16+2*k}:{17+2*k}], v47 offset:{L_Y+256*k}")
        A("s_waitcnt lgkmcnt(0)")
        for k in range(4): A(f"v_pk_add_f32 v[{16+4*k}:{17+4*k}], v[{16+4*k}:{17+4*k}], v[{18+4*k}:{19+4*k}]")
        A("v_pk_add_f32 v[16:17], v[16:17], v[20:21]"); A("v_pk_add_f32 v[24:25], v[24:25], v[28:29]")
        A("v_pk_add_f32 v[56:57], v[16:17], v[24:25]")
        A(f"buffer_store_dwordx4 v[56:59], v1, s[48:51], s96 offen sc1")
        stamp(10)
    dump(0, 12, "f")
    A("s_endpgm")
    spot()
    A("; ---- KV waves, rest: stream K then V with a few loads in flight, scores, per-wave softmax, P V")
    A("L_kv:"); inkv[0] = True
    if o.prio == 2: A("s_setprio 1")
    masks()
    if not o.atom or o.karg: wssrd()
    A("v_and_b32 v2, 15, v0"); A("v_lshlrev_b32 v3, 4, v2")
    A("v_lshrrev_b32 v9, 4, v0")
    A(f"s_mul_i32 s57, s3, {PSTR}")
    A("v_lshl_add_u32 v11, v2, 1, v9"); A("v_lshl_add_u32 v11, v11, 4, s57")
    A("s_lshl_b32 s57, s3, 3"); A("v_mov_b32 v2, s57")
    for n in range(o.n1, o.nq): kvload(n)
    if o.nq == 16 and o.xw == 8: cnt_add("v8", "v10", C_X)
    stamp(2)
    spot()
    def rd_q():
        A("ds_read_b128 v[12:15], v3")
        if o.kvpub: A(f"ds_read_b32 v26, v8 offset:{L_T}")
    cnt_wait("wq", "v8", "v10", 0, 2, rd_q)
    if o.prio == 1: A("s_setprio 1")
    assert o.order[:o.nq].count("K") == 8
    A(f"s_waitcnt vmcnt({o.nq - 1 - o.order.rindex('K')})")
    stamp(3)
    for d in range(4):
        for i in range(8):
            A(f"v_dot2_f32_bf16 v{16+i}, v{32+4*i+d}, v{12+d}, " + ("0" if d == 0 else f"v{16+i}"))
    spot()
    for k in range(4): A(f"v_add_f32_dpp v{16+k}, v{16+k}, v{16+k} row_ror:8 row_mask:0xf bank_mask:0x3")
    for k in range(4): A(f"v_add_f32_dpp v{16+k}, v{20+k}, v{20+k} row_ror:8 row_mask:0xf bank_mask:0xc")
    for k in range(2): A(f"v_add_f32_dpp v{16+k}, v{16+k}, v{16+k} row_half_mirror row_mask:0xf bank_mask:0x5")
    for k in range(2): A(f"v_add_f32_dpp v{16+k}, v{18+k}, v{18+k} row_half_mirror row_mask:0xf bank_mask:0xa")
    for pat in ("quad_perm:[1,0,3,2]", "quad_perm:[2,3,0,1]"):
        for k in range(2): A(f"v_add_f32_dpp v{16+k}, v{16+k}, v{16+k} {pat} {DP}")
    A("v_cvt_pk_bf16_f32 v17, v16, v17")
    A("v_lshlrev_b32 v16, 16, v17"); A("v_and_b32 v17, 0xffff0000, v17")
    A("v_mul_f32 v16, 0x3db504f3, v16"); A("v_mul_f32 v17, 0x3db504f3, v17")
    A("v_cvt_pk_bf16_f32 v17, v16, v17")
    A("v_lshlrev_b32 v16, 16, v17"); A("v_and_b32 v17, 0xffff0000, v17")
    A("v_max_f32 v25, v16, v17")
    A(f"v_max_f32_dpp v25, v25, v25 row_ror:4 {DP}"); A(f"v_max_f32_dpp v25, v25, v25 row_ror:8 {DP}")
    A("v_max_f32_dpp v25, v25, v25 row_bcast:15 row_mask:0xa bank_mask:0xf")
    A("v_max_f32_dpp v25, v25, v25 row_bcast:31 row_mask:0xc bank_mask:0xf")
    A("v_readlane_b32 s57, v25, 63")
    spot()
    for k in range(2): A(f"v_subrev_f32 v{16+k}, s57, v{16+k}")
    for k in range(2): A(f"v_mul_f32 v{16+k}, 0x3fb8aa3b, v{16+k}")
    for k in range(2): A(f"v_exp_f32 v{16+k}, v{16+k}")
    A(f"v_mov_b32 v10, {C_M}")
    A("v_add_f32 v24, v16, v17")
    for k in range(2): A(f"v_cvt_pk_bf16_f32 v{16+k}, v{16+k}, v{16+k}")
    extra = [f"v_add_f32_dpp v24, v24, v24 row_ror:4 {DP}", f"v_add_f32_dpp v24, v24, v24 row_ror:8 {DP}",
             "v_add_f32_dpp v24, v24, v24 row_bcast:15 row_mask:0xa bank_mask:0xf", "v_add_f32_dpp v24, v24, v24 row_bcast:31 row_mask:0xc bank_mask:0xf"]
    stamp(4)
    for i in range(8):
        for d in range(4):
            if i < 2 and d % 2 == 0: A(extra[2*i + d//2])
            A(f"v_and_b32_dpp v{32+4*i+d}, v{16+i%2}, v{4+d} row_newbcast:{4*(i//2)} {DP}")
        if i == 1:
            A("s_bfm_b64 exec, 1, 63")
            A(f"ds_write_b64 v2, v[24:25] offset:{L_LM}")
            A(f"ds_add_u32 v8, v10 offset:{L_CNT}")
            A("s_mov_b64 exec, -1")
            if o.nq < 16:
                for n in range(o.nq, 16): kvload(n)
                if o.xw == 8: cnt_add("v8", "v10", C_X)
        if i == 3: spot()
    if o.kvpub:
        A("; waves 0-3 publish the workgroup's partial output: they have no loads in flight that would hold the store back")
        A("v_lshrrev_b32 v9, 3, v0"); A("v_and_b32 v12, 7, v0")
        A(f"v_mul_u32_u24 v18, {PSTR}, v12"); A("v_lshl_add_u32 v18, v9, 4, v18"); A("s_lshl_b32 s57, s3, 7"); A("v_add_u32 v18, s57, v18")
        A("v_lshlrev_b32 v19, 2, v12")
        A("v_and_b32 v12, 4, v0"); A("v_lshlrev_b32 v20, 7, v9"); A("v_lshl_add_u32 v20, v12, 1, v20"); A("v_lshlrev_b32 v12, 2, v12")
        A("v_lshrrev_b32 v21, v12, v26"); A("v_lshrrev_b32 v22, 8, v21"); A("v_mov_b32 v23, 0xff")
        A("s_mov_b32 s48, s28"); A("s_and_b32 s49, s29, 0xffff"); A(f"s_mov_b32 s50, {WSUSE}"); A("s_mov_b32 s51, 0x20000")
        A("s_and_b32 s57, s2, 31"); A(f"s_mul_i32 s57, s57, {H1STR}"); A("s_lshl_b32 s58, s3, 10"); A("s_add_u32 s57, s57, s58")
        A("s_lshl_b32 s58, s30, 4"); A("s_add_u32 s57, s57, s58"); A(f"s_add_u32 s57, s57, {H1BASE}")
    stamp(5)
    for i in range(8):
        A(f"s_waitcnt vmcnt({7-i})")
        if 7 - i == o.xw: cnt_add("v8", "v10", C_X)
        A(f"v_mfma_f32_16x16x32_bf16 v[28:31], v[{32+4*i}:{35+4*i}], v[{64+4*i}:{67+4*i}], " + ("0" if i == 0 else "v[28:31]"))
    stamp(6)
    A("s_mov_b32 exec_hi, 0")
    A(f"s_cmp_gt_u32 s3, {3 if o.kvpub else (1 if o.refresh else 0)}")
    A(f"ds_write_b128 v11, v[28:31] offset:{L_PART}")
    if o.kvpub: A("s_mov_b32 exec_hi, -1")
    A("s_waitcnt lgkmcnt(0)")
    A("s_barrier")
    if o.stamps and not o.probe:
        A("s_cbranch_scc0 L_c")
        A(f"s_cmp_lg_u32 s3, {o.stw}"); A("s_cbranch_scc1 L_end")
        stamp(7)
        dump(16, 9, "kv")
        A("s_endpgm")
        A("L_c:")
    else:
        A("s_cbranch_scc1 L_end")
    spot()
    if o.kvpub:
        A(f"ds_read_b128 v[32:35], v18 offset:{L_PART}"); A(f"ds_read_b32 v37, v19 offset:{L_F}")
        A("s_waitcnt lgkmcnt(0)")
        A("v_pk_mul_f32 v[32:33], v[32:33], v[36:37] op_sel:[0,1] op_sel_hi:[1,1]")
        A("v_pk_mul_f32 v[34:35], v[34:35], v[36:37] op_sel:[0,1] op_sel_hi:[1,1]")
        for k in range(2): A(f"v_add_f32_dpp v{32+k}, v{32+k}, v{32+k} row_half_mirror row_mask:0xf bank_mask:0x5")
        for k in range(2): A(f"v_add_f32_dpp v{32+k}, v{34+k}, v{34+k} row_half_mirror row_mask:0xf bank_mask:0xa")
        for pat in ("quad_perm:[1,0,3,2]", "quad_perm:[2,3,0,1]"):
            for k in range(2): A(f"v_add_f32_dpp v{32+k}, v{32+k}, v{32+k} {pat} {DP}")
        A("v_bfi_b32 v32, v23, v21, v32"); A("v_bfi_b32 v33, v23, v22, v33")
        A("s_mov_b32 exec_lo, 0x11111111"); A("s_mov_b32 exec_hi, 0x11111111")
        A(f"buffer_store_dwordx2 v[32:33], v20, s[48:51], s57 offen {o.stl}")
        A("s_barrier")
    if o.nohand or o.atom: A("s_endpgm")
    if not o.atom:
        A("s_and_b32 s60, s2, 7"); A("s_lshr_b32 s61, s2, 3")
        A("s_lshl_b32 s97, s60, 14"); A("s_lshl_b32 s98, s61, 4"); A("s_add_u32 s97, s97, s98"); A(f"s_add_u32 s97, s97, {H2BASE}")
        A("s_lshl_b32 s60, s60, 7"); A("s_lshl_b32 s61, s61, 2"); A("s_add_u32 s98, s60, s61")
        A("v_lshlrev_b32 v15, 9, v0")
        if o.refresh:
            A("s_cmp_eq_u32 s3, 1"); A("s_cbranch_scc1 L_r")
        if o.pretouch & 4: A("buffer_load_dwordx4 v[16:19], v15, s[48:51], s97 offen sc1")
        A("s_add_u32 s94, s40, 0x01010101"); A("s_not_b32 s95, s94"); A("v_mov_b32 v34, s94")
        A("v_mov_b32 v1, s98"); A(f"v_mov_b32 v10, {C_DONE}")
        A("s_barrier")
        stamp(9)
        A("L_p2:")
        if o.p2sleep: A(f"s_sleep {o.p2sleep}")
        A("buffer_load_dwordx4 v[16:19], v15, s[48:51], s97 offen sc1")
        A("s_sub_u32 s93, s93, 1"); A("s_cbranch_scc1 L_end")
        A("s_waitcnt vmcnt(0)")
        if o.p2mask:
            A("v_cmp_ne_u64 vcc, s[94:95], v[18:19]")
            A("s_and_b32 exec_lo, exec_lo, vcc_lo"); A("s_cbranch_scc1 L_p2")
            A("s_mov_b32 exec_lo, -1")
        else:
            A("v_cmp_eq_u64 vcc, s[94:95], v[18:19]")
            A("s_cmp_eq_u64 vcc, exec"); A("s_cbranch_scc0 L_p2")
        stamp(10)
        if o.refresh: A(f"ds_write_b32 v8, v10 offset:{L_CNT}")
        red8("v_add_f32", [16, 17])
        for r in (16, 17): A(f"v_add_f32_dpp v{r}, v{r}, v{r} row_ror:8 {DP}")
        for r in (16, 17): A(f"v_add_f32_dpp v{r}, v{r}, v{r} row_bcast:15 row_mask:0xa bank_mask:0xf")
        A("v_cvt_pk_bf16_f32 v16, v16, v17")
        A("s_mov_b32 exec_lo, 0x80000000")
        A(f"global_store_dword v1, v16, s[24:25] {o.sto}")
        A("s_cmp_lg_u32 s2, 0"); A("s_cbranch_scc1 L_c_fin")
        A("global_store_dword v8, v34, s[28:29]")
        A("L_c_fin:")
        stamp(11)
        if o.stamps and not o.probe:
            for k in (9, 10, 11): A("s_waitcnt lgkmcnt(0)"); A(f"s_mov_b64 s[{64+2*(k-9)}:{65+2*(k-9)}], s[{64+2*k}:{65+2*k}]")
        dump(26, 3, "c")
        if o.refresh:
            A("s_endpgm")
            A("L_r:")
            if o.refresh == 2:
                A("s_lshr_b32 s61, s2, 3"); A("s_and_b32 s61, s61, 7"); A("s_lshl_b32 s61, s61, 2"); A("s_lshl_b32 exec_lo, 15, s61")
            A("s_barrier")
            def rl():
                A("buffer_load_dword v16, v15, s[48:51], s97 offen sc1"); A("s_waitcnt vmcnt(24)")
            cnt_wait("wr", "v8", "v10", 16, 1, rl)
    A("L_end:")
    A("s_endpgm")
    A("L_cold:")
    def timeout(name, pubs, addrs):
        A(f"L_{name}_to:")
        A("s_sub_u32 s93, s93, 1"); A("s_cbranch_scc1 L_end")
        A("s_cmp_lg_u32 s59, 0"); A(f"s_cbranch_scc1 L_{name}_t2")
        A("s_mov_b32 s59, 1")
        if name == "p1" and o.kvpub:
            A(f"ds_read_b128 v[64:67], v46 offset:{L_PART}"); A("s_waitcnt lgkmcnt(0)")
            A("v_pk_mul_f32 v[64:65], v[64:65], v[92:93] op_sel:[0,1] op_sel_hi:[1,1]")
            A("v_pk_mul_f32 v[66:67], v[66:67], v[92:93] op_sel:[0,1] op_sel_hi:[1,1]")
            for pat in ("row_half_mirror", "quad_perm:[1,0,3,2]", "quad_perm:[2,3,0,1]"):
                for r in range(64, 68): A(f"v_add_f32_dpp v{r}, v{r}, v{r} {pat} {DP}")
            tagq(64)
        for pb in pubs:
            if pb[0] == "x2":
                A("s_mov_b32 exec_lo, 0x10101010"); A("s_mov_b32 exec_hi, 0x10101010")
                A("s_lshr_b32 s60, s94, 24"); A("v_bfi_b32 v65, v8, s60, v65"); A(f"s_add_u32 s60, s54, {GOFF}")
                A("s_mov_b32 exec_lo, 0x11111111"); A("s_mov_b32 exec_hi, 0x11111111")
                A("buffer_store_dwordx2 v[64:65], v14, s[48:51], s60 offen sc1")
                continue
            lo, hi, r, va, so = pb
            A(f"s_mov_b32 exec_lo, {lo}"); A(f"s_mov_b32 exec_hi, {hi}")
            pubG(r, va, so)
        A("s_mov_b64 exec, -1")
        A(f"L_{name}_t2:")
        for a in addrs: A(f"s_xor_b32 {a}, {a}, {GOFF}")
        A("s_xor_b32 s92, s92, s99"); A("s_mov_b32 s58, 0"); A(f"s_branch L_{name}_ld")
    A("; ---- cold paths: no L2-local copy arrived (group spread over XCDs): publish write-through copies, poll both")
    timeout("p0", [("s98" if o.gtrim else "0x00ff00ff", "0", 80, "v1", "s57")], ["s56"])
    timeout("p1", [("x2",) if o.ptrim else ("0x01010101", "0x01010101", 64, "v14", "s54"), ("1", "0", 76, "v92", "s97")], ["s52", "s53"])


    txt = HEADER + DOC + f"; @launch grid=(256,1,1) block=(768,1,1) lds={LDS_BYTES}\n"
    txt += '.amdgcn_target "amdgcn-amd-amdhsa--gfx950"\n.text\n'
    if o.align: txt += ".p2align 12\n" + (f".fill {64*o.pre}, 4, 0xbf810000    ; unreachable: places the entry inside its 4 KiB page\n" if o.pre else "")
    txt += f".globl {KN}\n.p2align 8\n.type {KN},@function\n{KN}:\n"
    txt += "@@BODY@@"
    txt += f""".section .rodata,"a"
.p2align 6
.amdhsa_kernel {KN}
  .amdhsa_next_free_vgpr 96
  .amdhsa_next_free_sgpr 100
  .amdhsa_accum_offset 96
  .amdhsa_group_segment_fixed_size 0
  .amdhsa_kernarg_size 104
  .amdhsa_user_sgpr_count 2
  .amdhsa_user_sgpr_kernarg_segment_ptr 1
  .amdhsa_system_sgpr_workgroup_id_x 1
  .amdhsa_float_denorm_mode_32 3
.end_amdhsa_kernel
"""
    return txt, finalize(L).rstrip("\n").split("\n")

NPAD = 6
def place_pads(o, txt, body):
    import build
    isins = lambda l: l.startswith("    ")
    lab = []
    for i, l in enumerate(body):
        if isins(l): lab.append(f"I{i}:")
        lab.append(l)
    lab += [f".set PAD{w}, L_back" for w in range(NPAD)]
    open(o.out, "w").write(txt.replace("@@BODY@@", "\n".join(lab) + "\n")); build.build(o.out)
    d = syms(o.out[:-2] + ".co")
    idx = [i for i, l in enumerate(body) if isins(l)]
    size = {i: (d[f"I{j}"] - d[f"I{i}"]) for i, j in zip(idx, idx[1:])}; size[idx[-1]] = 4
    nxt = lambda a: min((a & ~63) + 17*64, (a | 4095) + 1)
    out, addr, n = [], d[KN], 0
    bound = nxt(addr); info = []
    i = 0; nopad = False
    while i < len(body):
        l = body[i]
        if l == "L_cold:":
            out += body[i:]; break
        if l == "L_nopad:": nopad = True
        if l == "L_kv:": nopad = False
        if l == "L_kv:":
            if addr >= bound + 64: info.append("UNCOVERED F TAIL")
            if addr < bound: out.append(f".fill {(bound-addr)//4}, 4, 0xbf810000    ; unreachable: aligns L_kv to an instruction-fetch window"); addr = bound
            info.append(("kv", hex(addr))); bound = nxt(addr)
        elif isins(l) and addr >= bound and not nopad:
            j, a = i, addr; pick = None
            while j < len(body) and a < bound + 64 and body[j] not in ("L_kv:", "L_nopad:", "L_cold:"):
                if isins(body[j]):
                    if body[j].split()[0] == "s_nop": pick = j; break
                    a += size[j]
                j += 1
            if pick is not None:
                while i < pick:
                    out.append(body[i]); addr += size.get(i, 0); i += 1
                k = int(body[i].split()[1])
                out += [f"PAD{n}:", "    s_cbranch_execz L_back"]; info.append((n, hex(addr))); bound = nxt(addr); addr += 4; n += 1
                if k: out.append(f"    s_nop {k-1}"); addr += 4
                i += 1; continue
            out += [f"PAD{n}:", "    s_cbranch_execz L_back"]; info.append((n, hex(addr))); bound = nxt(addr); addr += 4; n += 1
        out.append(l); addr += size.get(i, 0); i += 1
    assert n <= NPAD, n
    out = [re.sub(r"PAD(\d+)$", lambda m: m.group(0) if int(m.group(1)) < n else "L_back", x) for x in out]
    print("entry %x pads %s end %x" % (d[KN], info, addr), file=sys.stderr)
    return out

def parse(argv):
    p = argparse.ArgumentParser()
    p.add_argument("out")
    p.add_argument("--ld", default="nt"); p.add_argument("--ldf", default="none"); p.add_argument("--sto", default="none")
    p.add_argument("--stamps", type=int, default=0); p.add_argument("--stw", type=int, default=7)
    p.add_argument("--hmap", default="hi"); p.add_argument("--probe", default=""); p.add_argument("--scramble", type=int, default=0)
    p.add_argument("--depths", default="3333333333444444"); p.add_argument("--n0", type=int, default=1); p.add_argument("--n1", type=int, default=3)
    p.add_argument("--xthr", type=int, default=8); p.add_argument("--nl", type=int, default=300); p.add_argument("--gulate", type=int, default=0)
    p.add_argument("--wait_pub", type=int, default=1); p.add_argument("--sleep0", type=int, default=0); p.add_argument("--spin", type=int, default=400000)
    p.add_argument("--pretouch", type=int, default=2); p.add_argument("--align", type=int, default=1); p.add_argument("--warm", type=int, default=1)
    p.add_argument("--refresh", type=int, default=0); p.add_argument("--fakewo", type=int, default=0); p.add_argument("--ptl", type=int, default=1); p.add_argument("--gtrim", type=int, default=1); p.add_argument("--prewo", type=int, default=0); p.add_argument("--prepos", type=int, default=0); p.add_argument("--apad", type=int, default=8); p.add_argument("--kvpub", type=int, default=0); p.add_argument("--kf", default="21"); p.add_argument("--ilv", type=int, default=0); p.add_argument("--early", type=int, default=0); p.add_argument("--fresh", type=int, default=-1); p.add_argument("--ptrim", type=int, default=1); p.add_argument("--clean", type=int, default=0); p.add_argument("--prio", type=int, default=1); p.add_argument("--xperm", type=int, default=0); p.add_argument("--karg", type=int, default=0); p.add_argument("--post", type=int, default=0); p.add_argument("--postfirst", type=int, default=0); p.add_argument("--pace", default=""); p.add_argument("--x3", type=int, default=8); p.add_argument("--pipe", type=int, default=1); p.add_argument("--trim", type=int, default=1); p.add_argument("--gstat", default=""); p.add_argument("--order", default="K"*8 + "V"*8); p.add_argument("--xw", type=int, default=8); p.add_argument("--pol", default="ddddnnnnnnnnnnnn"); p.add_argument("--gu", default=""); p.add_argument("--nof", type=int, default=0); p.add_argument("--nox", type=int, default=0); p.add_argument("--pat", default="wis"); p.add_argument("--pstep", type=int, default=0x2000); p.add_argument("--hrot", type=int, default=0); p.add_argument("--stl", default="none"); p.add_argument("--xdirty", type=int, default=0); p.add_argument("--wb", type=int, default=0); p.add_argument("--touchout", type=int, default=0); p.add_argument("--nq", type=int, default=14); p.add_argument("--skipwd", type=int, default=1); p.add_argument("--pre", type=int, default=1); p.add_argument("--lmfirst", type=int, default=0); p.add_argument("--atom", type=int, default=1); p.add_argument("--sxor", type=int, default=0); p.add_argument("--p1sleep", type=int, default=0); p.add_argument("--lmonly", type=int, default=0); p.add_argument("--nohand", type=int, default=0)
    p.add_argument("--p2mask", type=int, default=0); p.add_argument("--p2sleep", type=int, default=0); p.add_argument("--csleep", type=int, default=0)
    o = p.parse_args(argv)
    for k in ("ld", "ldf", "sto", "stl"):
        if getattr(o, k) == "none": setattr(o, k, "")
        setattr(o, k, getattr(o, k).replace("+", " "))
    return o
if __name__ == "__main__":
    import build
    o = parse(sys.argv[1:])
    txt, body = gen(o)
    if o.warm: body = place_pads(o, txt, body)
    open(o.out, "w").write(txt.replace("@@BODY@@", "\n".join(body) + "\n"))
    print(build.build(o.out))
    d = syms(o.out[:-2] + ".co")
    print("check:", {k: hex(v) for k, v in d.items() if k.startswith("PAD") or k in ("L_kv", "L_end")}, file=sys.stderr)
```

```python
import sys, argparse, re
from asmlib import finalize
from gen2 import syms
KN = "gated_mix__sliding_block_cached__glu_gated_reglu__decode_kernel"
HEADER = open("gated_mix__sliding_block_cached__glu_gated_reglu__decode.s.ref").read().split("; Override launch")[0]

H0BASE = 4096
H1BASE = H0BASE + 32*4*8*256
H1STR = 33*128
GOFF = 0x80000
H2BASE = 2*GOFF
WSUSE = H2BASE + 64*256
L_G = 512; L_CNT = 520; L_LM = 528; L_PART = 768; PSTR = 640; L_Y = L_PART + 8*PSTR
LDS_BYTES = L_Y + 8*256
C_Q, C_X, C_G, C_M = 1, 16, 256, 4096
DP = "row_mask:0xf bank_mask:0xf"
NPAD = 6
DOC = """;
;   attention   : flash-decoding partials {o, max, sum}, all-gathered (hand-off 1)
;
"""

def gen(o):
    L = []
    A = L.append
    C = lambda t: A("; " + t)
    inkv = [False]
    SM = {"start": 0, "late": 1, "b3": 2, "pub": 3, "wo": 4, "ok": 5, "b4": 6, "end": 7}
    def stamp(k):
        if not o.stamps or (inkv[0] and k != "start"): return
        if o.probe and k not in ("start", o.probe.split(":")[0]): return
        A(f"s_memrealtime s[{64+2*SM[k]}:{65+2*SM[k]}]")
    def dump():
        if not o.stamps: return
        A("s_waitcnt lgkmcnt(0)")
        if o.probe:
            k1, stat, amp, basec = o.probe.split(":"); k1 = SM[k1]
            A("s_cmp_lg_u32 s3, 0"); A("s_cbranch_scc1 L_end")
            A("s_mov_b64 exec, 1"); A("s_lshl_b32 s60, s2, 3"); A(f"s_add_u32 s60, s60, {GOFF}")
            A("v_mov_b32 v16, s64"); A(f"v_mov_b32 v17, s{64+2*k1}"); A("buffer_store_dwordx2 v[16:17], v92, s[48:51], s60 offen sc1")
            A("s_cmp_lg_u32 s2, 0"); A("s_cbranch_scc1 L_end")
            A("L_gs:"); A("s_memrealtime s[62:63]"); A("s_waitcnt lgkmcnt(0)"); A("s_sub_u32 s62, s62, s64"); A("s_cmp_lt_u32 s62, 1500"); A("s_cbranch_scc1 L_gs")
            A("s_mov_b64 exec, -1"); A("v_lshlrev_b32 v1, 5, v0"); A(f"s_mov_b32 s60, {GOFF}")
            A("buffer_load_dwordx4 v[16:19], v1, s[48:51], s60 offen sc1"); A("buffer_load_dwordx4 v[20:23], v1, s[48:51], s60 offen offset:16 sc1")
            A("s_waitcnt vmcnt(0)"); A("s_sub_u32 s61, s64, 1000")
            for r in range(16, 24): A(f"v_subrev_u32 v{r}, s61, v{r}")
            A("v_min_u32 v16, v16, v18"); A("v_min3_u32 v16, v16, v20, v22")
            op = {"max": "v_max_u32", "min": "v_min_u32", "avg": "v_add_u32"}[stat]
            A(f"{op} v17, v17, v19"); A(f"{op} v21, v21, v23"); A(f"{op} v17, v17, v21")
            for pat in ("quad_perm:[1,0,3,2] " + DP, "quad_perm:[2,3,0,1] " + DP, "row_half_mirror " + DP, "row_ror:8 " + DP,
                        "row_bcast:15 row_mask:0xa bank_mask:0xf", "row_bcast:31 row_mask:0xc bank_mask:0xf"):
                A(f"v_min_u32_dpp v16, v16, v16 {pat}"); A(f"{op}_dpp v17, v17, v17 {pat}")
            if stat == "avg": A("v_lshrrev_b32 v17, 8, v17")
            A("v_sub_u32 v17, v17, v16"); A("v_readlane_b32 s60, v17, 63"); A("s_nop 3")
            A(f"s_mul_i32 s60, s60, {amp}"); A(f"s_add_u32 s60, s60, {basec}"); A("s_min_u32 s60, s60, 100000")
            A("L_spin:"); A("s_memrealtime s[62:63]"); A("s_waitcnt lgkmcnt(0)"); A("s_sub_u32 s62, s62, s64"); A("s_cmp_lt_u32 s62, s60"); A("s_cbranch_scc1 L_spin")
            return
        A("s_mov_b64 exec, 1")
        A("s_lshl_b32 s60, s2, 8"); A("s_add_u32 s62, s28, s60"); A("s_addc_u32 s63, s29, 0")
        A("s_add_u32 s62, s62, 0x8000000"); A("s_addc_u32 s63, s63, 0")
        A("s_lshl_b32 s60, s3, 6"); A("v_mov_b32 v3, s60")
        for k in range(8):
            A(f"v_mov_b32 v4, s{64+2*k}"); A(f"v_mov_b32 v5, s{65+2*k}")
            A(f"global_store_dwordx2 v3, v[4:5], s[62:63] offset:{8*k}"); A("s_nop 1")
    def tagq(r):
        for i in range(4): A(f"v_bfi_b32 v{r+i}, v8, s{40+i}, v{r+i}")
    def perm2(r, t):
        A(f"v_perm_b32 v{t}, v{r+1}, v{r}, s63"); A(f"v_perm_b32 v{t+1}, v{r+3}, v{r+2}, s63")
    def expect(): A("s_and_b32 s44, s92, 0xffff"); A("s_lshr_b32 s45, s92, 16")
    def red8(op, rs):
        for pat in ("quad_perm:[1,0,3,2]", "quad_perm:[2,3,0,1]", "row_half_mirror"):
            for r in rs: A(f"{op}_dpp v{r}, v{r}, v{r} {pat} {DP}")
    def swapred(r):
        A(f"v_permlane32_swap_b32 v{r}, v{r+2}"); A(f"v_permlane32_swap_b32 v{r+1}, v{r+3}")
        A(f"v_pk_add_f32 v[{r}:{r+1}], v[{r}:{r+1}], v[{r+2}:{r+3}]")
        A(f"v_permlane16_swap_b32 v{r}, v{r+1}")
        A(f"v_add_f32 v{r}, v{r}, v{r+1}")
        A(f"v_add_f32_dpp v{r}, v{r}, v{r} row_ror:8 {DP}")
    def masks():
        A("v_and_b32 v2, 1, v0"); A("v_lshlrev_b32 v2, 4, v2"); A("v_mov_b32 v3, 0xffff"); A("v_lshlrev_b32 v2, v2, v3")
        A("v_bfe_u32 v3, v0, 1, 2")
        for d in range(4):
            A(f"v_cmp_eq_u32 vcc, {d}, v3"); A(f"v_cndmask_b32 v{4+d}, 0, v2, vcc")
    def cnt_add(vz, vt, val):
        A(f"v_mov_b32 {vt}, {val}"); A("s_mov_b64 exec, 1"); A(f"ds_add_u32 {vz}, {vt} offset:{L_CNT}"); A("s_mov_b64 exec, -1")
    def cnt_wait(name, vz, vt, shift, need, extra=None):
        A(f"L_{name}:")
        A(f"ds_read_b32 {vt}, {vz} offset:{L_CNT}")
        if extra: extra()
        A("s_sub_u32 s93, s93, 1"); A("s_cbranch_scc1 L_end")
        A("s_waitcnt lgkmcnt(0)")
        A(f"v_readfirstlane_b32 s60, {vt}"); A(f"s_bfe_u32 s60, s60, {(4 << 16) | shift:#x}"); A(f"s_cmp_ge_u32 s60, {need}")
        A(f"s_cbranch_scc0 L_{name}")

    C("---- entry: s3 = wave, s30 = key split / column slice s, s31 = head = FFN group, s93 = bound for every wait loop")
    stamp("start")
    if o.pro:
        A("s_load_dwordx2 s[4:5], s[0:1], 0")
        if o.pro == 1 or o.stamps: A("s_load_dwordx2 s[28:29], s[0:1], 96")
    else:
        A("s_load_dwordx16 s[4:19], s[0:1], 0")
        A("s_load_dwordx8 s[20:27], s[0:1], 64")
        A("s_load_dwordx2 s[28:29], s[0:1], 96")
    A("s_cmp_ge_u32 s2, 256"); A("s_cbranch_scc1 L_end")
    if o.scramble:
        A("s_lshr_b32 s3, s2, 5"); A("s_and_b32 s3, s3, %d" % o.scramble); A("s_xor_b32 s2, s2, s3")
    A("v_lshrrev_b32 v1, 6, v0")
    A("v_and_b32 v0, 63, v0")
    A("v_readfirstlane_b32 s3, v1")
    A("s_lshr_b32 s30, s2, 5")
    if o.sxor: A(f"s_xor_b32 s30, s30, {o.sxor}")
    A("s_and_b32 s31, s2, 7"); A("s_bfe_u32 s52, s2, 0x20003"); A("s_lshl2_add_u32 s31, s31, s52")
    A("s_mov_b32 s35, 0x20000"); A("s_mov_b32 s39, 0x20000")
    A(f"s_mov_b32 s93, {o.spin}")
    A("s_cmp_lt_u32 s3, 4"); A("s_cbranch_scc1 L_f")
    C("---- KV waves: clear the LDS counter word, start the K stream (1 KiB = 4 keys per load)")
    if o.pro: A("s_load_dwordx2 s[32:33], s[0:1], 8"); A("s_load_dwordx2 s[36:37], s[0:1], 16")
    A("v_mov_b32 v8, 0"); A(f"ds_write_b32 v8, v8 offset:{L_CNT}")
    A("s_sub_u32 s3, s3, 4")
    if o.gs:
        gsh, ca, cb, ru = map(int, o.gs.split(":"))
        A("s_lshl_b32 s52, s31, 21"); A("s_add_u32 s52, s52, 0x180000")
        A(f"s_lshl_b32 s53, s30, {16 if gsh == 14 else 14}"); A("s_add_u32 s52, s52, s53")
        A("v_and_b32 v1, 15, v0"); A("v_lshl_add_u32 v1, v1, 4, s52"); A("v_lshrrev_b32 v2, 4, v0"); A(f"v_lshl_add_u32 v1, v2, {gsh}, v1")
        A(f"s_mul_i32 s53, s31, {ca}"); A(f"s_mul_i32 s55, s30, {cb}"); A("s_add_u32 s53, s53, s55"); A(f"s_lshl_b32 s53, s53, {ru}")
        A("s_lshl_b32 s54, s3, 8"); A("s_add_u32 s54, s54, s53")
        A("s_movk_i32 s55, 0x3fff"); A("s_movk_i32 s56, 0x800"); A("s_and_b32 s54, s54, s55")
    elif o.pat:
        order, ca, cb, cc, *un = o.pat.split(":"); reg = {"w": "s3", "s": "s30"}
        ip = order.index("i")
        A("s_lshl_b32 s52, s31, 21"); A("s_add_u32 s52, s52, 0x180000"); A("s_mov_b32 s54, 0")
        for pos, f in enumerate(order):
            if f == "i": continue
            A(f"s_lshl_b32 s53, {reg[f]}, {10+3*pos}")
            A("s_add_u32 s52, s52, s53" if pos > ip else "s_add_u32 s54, s54, s53")
        A("v_lshl_add_u32 v1, v0, 4, s52")
        unit = int(un[0]) if un else 10 + 3*ip - (1 if ip else 0)
        A(f"s_mul_i32 s53, s31, {ca}"); A(f"s_mul_i32 s55, s30, {cb}"); A("s_add_u32 s53, s53, s55"); A(f"s_mul_i32 s55, s3, {cc}"); A("s_add_u32 s53, s53, s55")
        A(f"s_lshl_b32 s53, s53, {unit}"); A("s_add_u32 s54, s54, s53")
        A(f"s_mov_b32 s55, {(1 << (13+3*ip)) - 1}"); A(f"s_mov_b32 s56, {1 << (10+3*ip)}")
        A("s_and_b32 s54, s54, s55")
    else:
        A("s_lshl_b32 s52, s30, 16"); A("s_lshl_b32 s53, s31, 21"); A("s_add_u32 s52, s52, s53"); A("s_add_u32 s52, s52, 0x180000")
        A("v_lshl_add_u32 v1, v0, 4, s52")
        A("s_lshl1_add_u32 s54, s30, s31"); A("s_lshl2_add_u32 s54, s54, s3"); A("s_lshl_b32 s54, s54, 10")
        A("s_mov_b32 s55, 0xffff"); A("s_movk_i32 s56, 0x2000")
        A("s_and_b32 s54, s54, s55")
    A("s_mov_b32 s34, 0x4000000"); A("s_mov_b32 s38, 0x4000000")
    A("s_waitcnt lgkmcnt(0)")
    if not o.pro: A("s_mov_b32 s32, s6"); A("s_and_b32 s33, s7, 0xffff" if (o.pat or o.gs) else "s_and_b32 s33, s7, s55"); A("s_mov_b32 s36, s8"); A("s_and_b32 s37, s9, 0xffff" if (o.pat or o.gs) else "s_and_b32 s37, s9, s55")
    depths = [int(c, 16) for c in o.depths]
    def kvload(n):
        m = n // 8; r = 32 + 4*n
        if depths[n] and n >= depths[n]: A(f"s_waitcnt vmcnt({depths[n]-1})")
        A(f"buffer_load_dwordx4 v[{r}:{r+3}], v1, s[{32+4*m}:{35+4*m}], s54 offen" + (" nt" if o.pol[n] == "n" else ""))
        if n < 15: A("s_add_u32 s54, s54, s56"); A("s_and_b32 s54, s54, s55")
    for n in range(o.n0): kvload(n)
    A("s_barrier")
    for n in range(o.n0, o.n1): kvload(n)
    C("instruction-cache warm-up: each wave touches one fetch window of the code (EXEC = 0 sends it straight back)")
    A("s_mov_b64 exec, 0")
    for w in range(NPAD):
        A(f"s_cmp_eq_u32 s3, {w}"); A(f"s_cbranch_scc1 PAD{w}")
    A("L_back:")
    A("s_mov_b64 exec, -1")
    A("s_branch L_kv")

    C("---- F waves: rows [64s, 64s+64) of wq (waves 0,1: two 64-column halves of the head), W_gate (2), W_up (3)")
    A("L_f:")
    if o.pro:
        A("s_lshl3_add_u32 s52, s3, 32"); A("s_cmp_lt_u32 s3, 2"); A("s_cselect_b32 s52, 24, s52")
        A("s_load_dwordx2 s[32:33], s[0:1], s52")
        if o.pro == 2: A("s_load_dwordx2 s[28:29], s[0:1], 96")
    A("v_lshrrev_b32 v9, 3, v0"); A("v_and_b32 v10, 7, v0")
    A("s_min_u32 s46, s31, 12"); A("s_mul_i32 s47, s31, 5"); A("s_add_u32 s46, s46, s47")
    A("s_cmp_lt_u32 s31, 12"); A("s_cselect_b32 s47, 6, 5")
    A("s_lshl_b32 s52, s31, 8"); A("s_lshl_b32 s53, s3, 7"); A("s_add_u32 s52, s52, s53")
    A("s_lshl_b32 s53, s46, 4")
    A("s_cmp_lt_u32 s3, 2")
    A("s_cselect_b32 s52, s52, s53"); A("s_movk_i32 s53, 2752"); A("s_cselect_b32 s53, 0x2000, s53")
    A("s_cselect_b32 s54, 8, s47")
    A("s_mov_b32 s34, 1409024"); A("s_cselect_b32 s34, 0x400000, s34")
    A("s_lshl_b32 s55, s30, 3")
    A("v_add_u32 v1, s55, v9"); A("v_lshlrev_b32 v2, 4, v1")
    A("v_lshlrev_b32 v1, 3, v1"); A("v_mul_lo_u32 v1, v1, s53")
    A("v_cmp_gt_u32 vcc, s54, v10")
    A("v_lshl_add_u32 v1, v10, 4, v1"); A("v_add_u32 v1, s52, v1")
    A("v_mov_b32 v3, 0x40000000"); A("v_cndmask_b32 v1, v3, v1, vcc")
    A("s_mov_b32 s55, 0")
    A("s_waitcnt lgkmcnt(0)")
    A("global_load_dwordx4 v[12:15], v2, s[4:5]")
    if not o.pro:
        A("s_cmp_eq_u32 s3, 2"); A("s_cselect_b64 s[32:33], s[16:17], s[18:19]")
        A("s_cmp_lt_u32 s3, 2"); A("s_cselect_b64 s[32:33], s[10:11], s[32:33]")
        A("s_and_b32 s33, s33, 0xffff")
    for i in range(8):
        A(f"buffer_load_dwordx4 v[{16+4*i}:{19+4*i}], v1, s[32:35], s55 offen{o.ldf}")
        if i < 7: A("s_add_u32 s55, s55, s53")
    if o.pro: A("s_load_dwordx8 s[20:27], s[0:1], 64"); A("s_load_dwordx2 s[12:13], s[0:1], 32")
    A("s_barrier")
    if o.pro: A("s_waitcnt lgkmcnt(0)")
    A("s_and_b32 s62, s2, 31"); A("s_lshl_b32 s90, s62, 7")
    A("s_load_dword s40, s[28:29], s90")
    A("s_mov_b32 s48, s28"); A("s_and_b32 s49, s29, 0xffff"); A(f"s_mov_b32 s50, {WSUSE}"); A("s_mov_b32 s51, 0x20000")
    A("s_mov_b32 s36, s20"); A("s_and_b32 s37, s21, 0xffff"); A("s_mov_b32 s38, 1409024")
    A("s_cmp_lg_u32 s3, 3"); A("s_cbranch_scc1 L_f_nog1")
    A("v_lshlrev_b32 v2, 4, v0")
    A("global_load_dwordx4 v[84:87], v2, s[4:5]")
    A("global_load_dwordx4 v[88:91], v2, s[22:23]")
    A("L_f_nog1:")
    if o.tlb:
        A("s_cmp_lg_u32 s3, 2"); A("s_cbranch_scc1 L_f_notlb")
        A("s_mov_b64 exec, 1")
        if o.tlb & 1:
            A("s_lshl_b32 s60, s31, 21"); A("s_add_u32 s60, s60, 0x180000"); A("v_mov_b32 v84, s60"); A("global_load_dword v85, v84, s[8:9] nt")
        if o.tlb & 2:
            A("s_lshl_b32 s60, s31, 17"); A("v_mov_b32 v84, s60"); A("global_load_dword v86, v84, s[12:13] nt")
            A("s_lshl_b32 s60, s46, 13"); A("v_mov_b32 v84, s60"); A("global_load_dword v87, v84, s[20:21] nt")
        if o.tlb & 4:
            A("v_mov_b32 v84, 0"); A("global_load_dword v88, v84, s[28:29]")
        if o.tlb & 8:
            A("v_mov_b32 v84, 0"); A("global_load_dword v89, v84, s[24:25]")
        A("s_mov_b64 exec, -1")
        A("L_f_notlb:")
    masks()
    A("v_mov_b32 v8, 0xff"); A("v_mov_b32 v92, 0")
    A("s_mov_b32 s63, 0x0c0c0400")
    A("s_lshl2_add_u32 s56, s62, s3"); A("s_lshl_b32 s56, s56, 11"); A(f"s_add_u32 s56, s56, {H0BASE}")
    A("s_lshl4_add_u32 s57, s30, s56")
    A("v_lshrrev_b32 v1, 4, v0"); A("v_lshl_add_u32 v1, v10, 1, v1"); A("v_lshlrev_b32 v1, 7, v1")
    A("v_lshlrev_b32 v2, 4, v0")
    A("s_mov_b32 s60, 0x01000100"); A("s_mov_b32 s61, 0x03020302")
    A("s_mov_b32 s59, 0")
    A("s_cmp_lt_u32 s3, 2"); A("s_mov_b32 s98, 0x003f003f"); A("s_cselect_b32 s98, 0x00ff00ff, s98"); A("s_cselect_b32 s95, -1, 0")
    C("output accumulators {f64 sum, f64 count}: eight waves zero them and then raise a flag in d_debug")
    A("s_and_b32 s91, s3, 1"); A("s_lshl1_add_u32 s96, s30, s91"); A(f"s_lshl_b32 s96, s96, {9 if o.a32 == 3 else 10}"); A(f"s_add_u32 s96, s96, {H2BASE}")
    A("s_cmp_eq_u32 s62, s30"); A("s_cselect_b32 s91, s3, 0")
    A("s_cmp_lg_u32 s91, 2"); A("s_cbranch_scc1 L_f_noinit")
    A("v_mov_b32 v93, 0"); A("v_mov_b32 v94, 0"); A("v_mov_b32 v95, 0")
    A("v_lshlrev_b32 v11, 4, v10"); A("v_lshl_add_u32 v11, v9, 8, v11")
    A("buffer_store_dwordx4 v[92:95], v11, s[48:51], s96 offen sc1")
    if o.preout:
        A("s_lshl_b32 s58, s30, 7"); A("v_add_u32 v11, s58, v2"); A("s_mov_b64 exec, 0xff")
        if o.preout == 1: A("global_store_dwordx4 v11, v[92:95], s[24:25] sc1")
        if o.preout == 2: A("global_load_dwordx4 v[84:87], v11, s[24:25]")
        A("s_mov_b64 exec, -1")
    A("L_f_noinit:")
    A("s_lshl_b32 s58, s30, 2")
    C("A operands: x[row] on the diagonal, so that one MFMA multiplies 8 rows x 64 columns in their memory layout")
    A("s_waitcnt vmcnt(8)")
    for i in range(8):
        A(f"v_perm_b32 v11, v{12+i//2}, v{12+i//2}, s{60+i%2}")
        for d in range(4): A(f"v_and_b32 v{48+4*i+d}, v11, v{4+d}")
    A("v_mov_b32 v94, s58")
    A("s_waitcnt lgkmcnt(0)")
    C("launch tag T = the group's word in ws + 0x01010101 (s94); the L2-local copies carry T with this XCD's id mixed in (s40..s43)")
    A("s_getreg_b32 s99, hwreg(HW_REG_XCC_ID, 0, 4)"); A("s_lshl_b32 s99, s99, 28")
    A("s_add_u32 s94, s40, 0x01010101"); A("s_xor_b32 s40, s94, s99")
    A("s_lshr_b32 s41, s40, 8"); A("s_lshr_b32 s42, s40, 16"); A("s_lshr_b32 s43, s40, 24")
    A("s_waitcnt vmcnt(0)")
    A("s_cmp_lg_u32 s91, 2"); A("s_cbranch_scc1 L_f_noflag")
    A("s_mov_b64 exec, 1")
    A("global_store_dword v94, v8, s[26:27] sc1")
    A("s_mov_b64 exec, -1")
    A("L_f_noflag:")
    C("partial q / gate / up over this workgroup's 64 rows; publish it to the 8 workgroups of the group")
    for i in range(8):
        A(f"v_mfma_f32_16x16x32_bf16 v[80:83], v[{48+4*i}:{51+4*i}], v[{16+4*i}:{19+4*i}], " + ("0" if i == 0 else "v[80:83]"))
    for i in range(4): A(f"v_permlane32_swap_b32 v{80+i}, v{12+i}")
    for i in range(4): A(f"v_add_f32_dpp v{80+i}, v{12+i}, v{80+i} row_ror:8 {DP}")
    tagq(80)
    A("s_mov_b32 exec_lo, s98"); A("s_mov_b32 exec_hi, 0")
    A("buffer_store_dwordx4 v[80:83], v1, s[48:51], s57 offen")
    A("s_mov_b64 exec, -1")
    C("wave 3: g = sigmoid(sum(x * gate_w)) and 1 - g with the reference's bf16 roundings")
    A("s_cmp_lg_u32 s3, 3"); A("s_cbranch_scc1 L_f_nog2")
    for i in range(4):
        A(f"v_lshlrev_b32 v16, 16, v{84+i}"); A(f"v_and_b32 v17, 0xffff0000, v{84+i}")
        A(f"v_lshlrev_b32 v18, 16, v{88+i}"); A(f"v_and_b32 v19, 0xffff0000, v{88+i}")
        A("v_pk_mul_f32 v[16:17], v[16:17], v[18:19]")
        A("v_cvt_pk_bf16_f32 v16, v16, v17")
        A("v_lshlrev_b32 v17, 16, v16"); A("v_and_b32 v16, 0xffff0000, v16")
        if i == 0: A("v_add_f32 v24, v16, v17")
        else: A("v_add_f32 v24, v24, v16"); A("v_add_f32 v24, v24, v17")
    red8("v_add_f32", [24])
    A(f"v_add_f32_dpp v24, v24, v24 row_ror:8 {DP}")
    A("v_add_f32_dpp v24, v24, v24 row_bcast:15 row_mask:0xa bank_mask:0xf")
    A("v_add_f32_dpp v24, v24, v24 row_bcast:31 row_mask:0xc bank_mask:0xf")
    A("v_cvt_pk_bf16_f32 v24, v24, v24"); A("v_and_b32 v24, 0xffff0000, v24")
    A("v_mul_f32 v24, 0xbfb8aa3b, v24"); A("v_exp_f32 v24, v24"); A("v_add_f32 v24, 1.0, v24"); A("v_rcp_f32 v24, v24")
    A("v_cvt_pk_bf16_f32 v24, v24, v24"); A("v_and_b32 v24, 0xffff0000, v24")
    A("v_sub_f32 v25, 1.0, v24"); A("v_cvt_pk_bf16_f32 v25, v25, v25"); A("v_and_b32 v25, 0xffff0000, v25")
    A("s_bfm_b64 exec, 1, 63")
    A(f"ds_write_b64 v92, v[24:25] offset:{L_G}")
    A("s_mov_b64 exec, -1")
    A("L_f_nog2:")
    C("hand-off 0: gather the 8 partials, sum, round to bf16, pass on through LDS")
    for r in range(20, 24): A(f"v_mov_b32 v{r}, 0")
    A(f"s_mov_b32 s58, {o.nl}"); A("s_mov_b32 s92, s40")
    A("s_waitcnt vmcnt(0)")
    A("L_p0:")
    A("s_sub_u32 s58, s58, 1"); A("s_cbranch_scc1 L_p0_to")
    A("L_p0_ld:")
    A("buffer_load_dwordx4 v[16:19], v2, s[48:51], s56 offen sc1")
    A("s_mov_b32 exec_hi, s95")
    A("buffer_load_dwordx4 v[20:23], v2, s[48:51], s56 offen offset:1024 sc1")
    expect()
    A("s_waitcnt vmcnt(0)")
    perm2(20, 28); A("v_cmp_ne_u64 s[60:61], s[44:45], v[28:29]")
    A("s_mov_b32 exec_hi, -1")
    perm2(16, 26); A("v_cmp_ne_u64 vcc, s[44:45], v[26:27]")
    A("s_or_b64 vcc, vcc, s[60:61]"); A("s_cbranch_scc1 L_p0" if o.noq < 2 else "s_nop 0")
    for r in range(16, 24): A(f"v_and_b32 v{r}, 0xffffff00, v{r}")
    red8("v_add_f32", list(range(16, 24)))
    A("v_cvt_pk_bf16_f32 v16, v16, v17"); A("v_cvt_pk_bf16_f32 v17, v18, v19")
    A("v_cvt_pk_bf16_f32 v18, v20, v21"); A("v_cvt_pk_bf16_f32 v19, v22, v23")
    A("s_lshl_b32 s55, s3, 7"); A("v_lshl_add_u32 v1, v9, 3, s55")
    A("ds_write_b64 v1, v[16:17]"); A("ds_write_b64 v1, v[18:19] offset:64")
    A("s_cmp_lt_u32 s3, 2"); A(f"s_cselect_b32 s55, {C_Q}, {C_G}")
    cnt_add("v92", "v1", "s55")
    A(f"s_mul_i32 s52, s62, {H1STR}"); A(f"s_add_u32 s52, s52, {H1BASE}"); A("s_lshl_b32 s53, s3, 10"); A("s_add_u32 s53, s53, s52")
    A("s_lshl_b32 s54, s30, 7"); A("s_add_u32 s54, s54, s53"); A("s_add_u32 s52, s52, 4096"); A("s_lshl4_add_u32 s97, s30, s52")
    A("v_lshlrev_b32 v13, 4, v10"); A("v_mov_b32 v12, v2")
    A("v_lshrrev_b32 v46, 4, v0"); A("v_lshl_add_u32 v14, v46, 3, v10"); A("v_lshlrev_b32 v14, 2, v14")
    if o.a32:
        A("v_and_b32 v47, 31, v0"); A("v_lshlrev_b32 v47, 2, v47"); A("v_lshrrev_b32 v46, 5, v0"); A(f"v_lshl_add_u32 v47, v46, {9 if o.a32 == 2 else 8}, v47")
    else:
        A("v_and_b32 v47, 15, v0"); A("v_lshlrev_b32 v47, 3, v47"); A("v_lshl_add_u32 v47, v46, 8, v47")
    C("accumulator flag; bring the hand-off 1 lines into L2 before anyone polls them: own line and the statistics line")
    A("s_mov_b64 exec, 1")
    A("global_load_dword v95, v94, s[26:27] sc1")
    A("buffer_load_dword v84, v92, s[48:51], s54 offen sc1" if o.pt1 else "buffer_load_dword v84, v92, s[48:51], s52 offen sc1")
    A("buffer_load_dword v85, v92, s[48:51], s52 offen sc1")
    A("s_mov_b64 exec, -1")
    A("s_mov_b32 s32, s12"); A("s_and_b32 s33, s13, 0xffff"); A("s_mov_b32 s34, 0x400000")
    A("s_lshl_b32 s55, s31, 17"); A("s_lshl_b32 s56, s3, 15"); A("s_add_u32 s55, s55, s56"); A("s_lshl_b32 s56, s30, 7"); A("s_add_u32 s55, s55, s56")
    A("v_lshl_add_u32 v1, v9, 11, v13")
    A("v_lshl_add_u32 v2, v9, 10, v13")
    A("s_add_u32 s57, s46, s3"); A("s_lshl_b32 s57, s57, 13"); A("s_add_u32 s56, s56, s57")
    A("s_add_u32 s57, s3, 4"); A("s_cmp_lt_u32 s57, s47"); A("s_mov_b32 s57, 0x40000000"); A("s_cselect_b32 s57, 0x8000, s57"); A("v_add_u32 v56, s57, v2")
    A("s_lshl_b32 s57, s3, 4"); A("v_lshl_add_u32 v3, v9, 1, s57")
    def rd_gu():
        A("ds_read_u16 v40, v3 offset:256"); A("ds_read_u16 v41, v3 offset:384")
        A("ds_read_u16 v42, v3 offset:320"); A("ds_read_u16 v43, v3 offset:448")
        A(f"ds_read_b64 v[44:45], v92 offset:{L_G}")
    C("h = relu(gate) * up; W_down rows whose h is exactly zero add nothing and are not fetched")
    WO = (0, 2, 1, 3)
    def wold(t): A(f"buffer_load_dwordx4 v[{24+4*t}:{27+4*t}], v1, s[32:35], {'s61' if t % 2 else 's55'} offen offset:{1024*(t//2)}{o.ld}")
    A("s_add_u32 s61, s55, 0x4000")
    for t in WO[:o.prea]: wold(t)
    if o.pre3 > o.prea:
        C("column slice 3 drains slower when all its lines are in flight at once: it fetches part of wo ahead")
        A("s_cmp_lg_u32 s30, 3"); A("s_cbranch_scc1 L_f_np3")
        for t in WO[o.prea:o.pre3]: wold(t)
        A("L_f_np3:")
    cnt_wait("wg", "v92", "v15", 8, 2, rd_gu)
    for t in range(2):
        a, b = 40+2*t, 41+2*t
        A(f"v_lshlrev_b32 v{a}, 16, v{a}"); A(f"v_lshlrev_b32 v{b}, 16, v{b}")
        A(f"v_max_f32 v{a}, 0, v{a}"); A(f"v_mul_f32 v{a}, v{a}, v{b}")
        A(f"v_cvt_pk_bf16_f32 v{a}, v{a}, v{a}")
        va = "v2" if t == 0 else "v56"
        A(f"v_and_b32 v{b}, 0x7fff, v{a}"); A(f"v_cmp_ne_u32 vcc, 0, v{b}"); A(f"v_mov_b32 v{b}, 0x40000000"); A(f"v_cndmask_b32 {va}, v{b}, {va}, vcc")
        for d in range(4): A(f"v_and_b32 v{48+4*t+d}, v{a}, v{4+d}")
    def wdld():
        A(f"buffer_load_dwordx4 v[16:19], v2, s[36:39], s56 offen{o.ld}")
        A(f"buffer_load_dwordx4 v[20:23], v56, s[36:39], s56 offen{o.ld}")
    if o.wdearly: wdld()
    A(f"v_mul_u32_u24 v46, {PSTR}, v9"); A("s_lshl_b32 s57, s3, 7"); A("v_add3_u32 v46, v46, v13, s57")
    A("v_bfe_u32 v3, v0, 4, 1"); A("v_lshl_add_u32 v3, v10, 1, v3"); A("v_lshlrev_b32 v3, 4, v3")
    A("v_lshrrev_b32 v11, 5, v0"); A("v_lshl_add_u32 v3, v11, 8, v3"); A("s_lshl_b32 s57, s3, 9"); A("v_add_u32 v3, s57, v3")
    A("v_lshlrev_b32 v11, 3, v10"); A("v_lshlrev_b32 v57, 2, v9")
    A("v_and_b32 v59, 24, v11"); A("v_lshrrev_b32 v58, v59, s40")
    A("s_cmp_eq_u32 s59, 0"); A(f"s_cselect_b32 s58, {o.nl}, 0"); A("s_mov_b32 s59, 0"); A("s_mov_b32 s92, s40")
    expect()
    C("softmax statistics of the 8 KV waves -> rescale factors and this workgroup's {sum, max}")
    cnt_wait("wm", "v92", "v15", 12, 8, lambda: A(f"ds_read_b64 v[76:77], v11 offset:{L_LM}"))
    A("v_mov_b32 v93, v77")
    red8("v_max_f32", [77])
    A("v_sub_f32 v93, v93, v77"); A("v_mul_f32 v93, 0x3fb8aa3b, v93"); A("v_exp_f32 v93, v93")
    A("v_mov_b32 v78, 0"); A("v_mul_f32 v76, v76, v93"); A("v_mov_b32 v79, 0")
    A("ds_bpermute_b32 v93, v57, v93")
    red8("v_add_f32", [76])
    tagq(76)
    A("s_cmp_lg_u32 s3, 0"); A("s_cbranch_scc1 L_f_nolm")
    A("s_mov_b64 exec, 1")
    A("buffer_store_dwordx4 v[76:79], v92, s[48:51], s97 offen")
    A("s_mov_b64 exec, -1")
    A("L_f_nolm:")
    C("every wave of the group has read the tag word by now: advance it for the next launch")
    A("s_lshl2_add_u32 s60, s30, s3"); A("s_cmp_lg_u32 s60, 3"); A("s_cbranch_scc1 L_f_noep")
    if o.ep == 2:
        A("v_mov_b32 v60, s94"); A("s_mov_b64 exec, 0xff")
        A("buffer_store_dwordx4 v[60:63], v13, s[48:51], s90 offen")
    else:
        A("v_mov_b32 v60, s94"); A("s_mov_b64 exec, 1")
        if o.ep != 3: A("buffer_store_dword v60, v92, s[48:51], s90 offen" + (" sc1" if o.ep == 1 else ""))
    A("s_mov_b64 exec, -1")
    A("L_f_noep:")
    C("W_down / wo slices go behind the last V loads")
    cnt_wait("wx", "v92", "v15", 4, 8)
    stamp("late")
    if o.l0:
        A("s_mov_b64 exec, 0xff")
        A("buffer_load_dwordx4 v[84:87], v13, s[48:51], s52 offen sc1")
        A("s_mov_b64 exec, -1")
    if o.pre3 > o.prea:
        A("s_cmp_eq_u32 s30, 3"); A("s_cbranch_scc1 L_f_p3")
        for t in WO[o.prea:o.pre3]: wold(t)
        A("L_f_p3:")
    if not o.wdearly: wdld()
    for t in WO[o.pre3:]: wold(t)
    C("the accumulators must be zeroed before anything is added")
    A("s_cmp_ge_u32 s3, 2"); A("s_cbranch_scc1 L_f_aok")
    A(f"s_waitcnt vmcnt({9 if o.l0 else 8})")
    A("L_f_achk:")
    A("v_readfirstlane_b32 s60, v95"); A("s_cmp_eq_u32 s60, 0"); A("s_cbranch_scc1 L_acc_re")
    A("v_lshrrev_b32 v95, 1, v0"); A("s_lshl_b32 s60, s3, 5"); A("v_add_u32 v95, s60, v95")
    A("v_and_b32 v94, 1, v0"); A("v_lshlrev_b32 v94, 10, v94"); A("v_lshl_add_u32 v94, v95, 2, v94")
    A("s_lshl_b32 s60, s30, 7"); A("v_lshl_add_u32 v95, v95, 1, s60")
    A("s_mov_b32 s88, 0xaaaaaaaa"); A("s_mov_b32 s89, s88")
    A("s_mov_b32 s90, 0"); A("s_mov_b32 s91, 0x403f0000")
    A("L_f_aok:")
    A("s_mov_b32 s86, 0x00ff00ff"); A("s_mov_b32 s87, s86")
    C("hand-off 1: combine the KV waves' partial outputs, publish one line, gather the head's 8 lines")
    A("s_barrier")
    A(f"ds_read_b128 v[64:67], v46 offset:{L_PART}")
    stamp("b3")
    A("s_waitcnt lgkmcnt(0)")
    A("v_pk_mul_f32 v[64:65], v[64:65], v[92:93] op_sel:[0,1] op_sel_hi:[1,1]")
    A("v_pk_mul_f32 v[66:67], v[66:67], v[92:93] op_sel:[0,1] op_sel_hi:[1,1]")
    swapred(64)
    A("s_mov_b64 exec, s[86:87]")
    A("v_bfi_b32 v64, v8, v58, v64")
    A("buffer_store_dword v64, v14, s[48:51], s54 offen")
    stamp("pub")
    A("s_mov_b64 exec, 0xff")
    A("buffer_load_dwordx4 v[72:75], v13, s[48:51], s52 offen sc1")
    A("s_mov_b64 exec, -1")
    if o.first == 0: A("buffer_load_dwordx4 v[68:71], v12, s[48:51], s53 offen sc1")
    A(f"s_waitcnt vmcnt({(7 if o.first == 0 else 6) - o.pre3})")
    A("v_mfma_f32_16x16x32_bf16 v[80:83], v[48:51], v[16:19], 0")
    A("v_mfma_f32_16x16x32_bf16 v[80:83], v[52:55], v[20:23], v[80:83]")
    A("v_pk_mul_f32 v[80:81], v[80:81], v[44:45] op_sel:[0,1] op_sel_hi:[1,1]")
    A("v_pk_mul_f32 v[82:83], v[82:83], v[44:45] op_sel:[0,1] op_sel_hi:[1,1]")
    if o.first:
        if o.first > 1: A(f"s_waitcnt vmcnt({7 - o.first})")
        A("buffer_load_dwordx4 v[68:71], v12, s[48:51], s53 offen sc1")
    if o.l0:
        C("statistics sampled ahead of the wo loads: if complete, the weights are ready before the last rows arrive")
        perm2(84, 42); A("v_cmp_ne_u64 vcc, s[44:45], v[42:43]")
        A("v_and_b32 v85, 0xffff0000, v85")
        A("s_and_b32 vcc_lo, vcc_lo, 0xff"); A("s_cbranch_scc1 L_p1_c")
        A(f"v_max_f32_dpp v86, v85, v85 quad_perm:[1,0,3,2] {DP}")
        A("v_and_b32 v84, 0xffffff00, v84")
        A(f"v_max_f32_dpp v86, v86, v86 quad_perm:[2,3,0,1] {DP}")
        A(f"v_max_f32_dpp v86, v86, v86 row_half_mirror {DP}")
        A("v_sub_f32 v85, v85, v86"); A("v_mul_f32 v85, 0x3fb8aa3b, v85"); A("v_exp_f32 v85, v85")
        A("v_mul_f32 v84, v85, v84")
        A("ds_bpermute_b32 v43, v57, v85")
        red8("v_add_f32", [84])
        A("v_rcp_f32 v84, v84"); A("v_mul_f32 v84, v44, v84"); A("v_readfirstlane_b32 s60, v84")
        if o.l0 == 1:
            A("s_waitcnt vmcnt(0)")
            perm2(68, 40); A("v_cmp_ne_u64 vcc, s[44:45], v[40:41]")
            A("s_cmp_eq_u64 vcc, 0"); A("s_cbranch_scc1 L_p1_go")
            A("s_mov_b64 exec, vcc")
            A("buffer_load_dwordx4 v[68:71], v12, s[48:51], s53 offen sc1")
        else:
            A(f"s_waitcnt vmcnt({o.l0 + 1})")
        A("s_branch L_p1b")
    if o.stamps and not o.probe: A("s_waitcnt vmcnt(3)"); stamp("wo")
    if o.lmf:
        A("L_p1_c:")
        A("s_waitcnt vmcnt(1) lgkmcnt(0)")
        perm2(72, 42); A("v_cmp_ne_u64 vcc, s[44:45], v[42:43]")
        A("v_and_b32 v73, 0xffff0000, v73")
        A("s_and_b32 vcc_lo, vcc_lo, 0xff"); A("s_cbranch_scc1 L_p1")
        C("weights g * exp(m_p - M) / L of the 8 partials (lanes 0-7), then spread to the lanes of producer l / 8")
        A(f"v_max_f32_dpp v74, v73, v73 quad_perm:[1,0,3,2] {DP}")
        A("v_and_b32 v72, 0xffffff00, v72")
        A(f"v_max_f32_dpp v74, v74, v74 quad_perm:[2,3,0,1] {DP}")
        A(f"v_max_f32_dpp v74, v74, v74 row_half_mirror {DP}")
        A("v_sub_f32 v73, v73, v74"); A("v_mul_f32 v73, 0x3fb8aa3b, v73"); A("v_exp_f32 v73, v73")
        A("s_waitcnt vmcnt(0)")
        A("ds_bpermute_b32 v43, v57, v73")
        A("v_mul_f32 v72, v73, v72")
        perm2(68, 40)
        A(f"v_add_f32_dpp v72, v72, v72 quad_perm:[1,0,3,2] {DP}")
        A("v_cmp_ne_u64 s[46:47], s[44:45], v[40:41]")
        A("s_cmp_eq_u64 s[46:47], 0"); A("s_cbranch_scc1 L_p1_all")
        A("s_mov_b64 exec, s[46:47]")
        A("buffer_load_dwordx4 v[68:71], v12, s[48:51], s53 offen sc1")
        A("s_mov_b64 exec, -1")
        A("L_p1_all:")
        A(f"v_add_f32_dpp v72, v72, v72 quad_perm:[2,3,0,1] {DP}")
        A(f"v_add_f32_dpp v72, v72, v72 row_half_mirror {DP}")
        A("v_rcp_f32 v72, v72")
        A("v_mul_f32 v72, v44, v72")
        A("v_readfirstlane_b32 s60, v72")
        A("s_cbranch_scc1 L_p1_go")
        A("s_mov_b64 exec, s[46:47]")
    else:
        A("L_p1_c:")
        A("s_waitcnt vmcnt(0) lgkmcnt(0)")
        perm2(68, 40); A("v_cmp_ne_u64 s[46:47], s[44:45], v[40:41]")
        perm2(72, 42); A("v_cmp_ne_u64 vcc, s[44:45], v[42:43]")
        A("s_cmp_eq_u64 s[46:47], 0"); A("s_cbranch_scc1 L_p1_all")
        A("s_mov_b64 exec, s[46:47]")
        A("buffer_load_dwordx4 v[68:71], v12, s[48:51], s53 offen sc1")
        A("s_mov_b64 exec, -1")
        A("L_p1_all:")
        A("v_and_b32 v73, 0xffff0000, v73")
        A("s_and_b32 vcc_lo, vcc_lo, 0xff"); A("s_cbranch_scc1 L_p1")
        C("weights g * exp(m_p - M) / L of the 8 partials (lanes 0-7), then spread to the lanes of producer l / 8")
        A(f"v_max_f32_dpp v74, v73, v73 quad_perm:[1,0,3,2] {DP}")
        A("v_and_b32 v72, 0xffffff00, v72")
        A(f"v_max_f32_dpp v74, v74, v74 quad_perm:[2,3,0,1] {DP}")
        A(f"v_max_f32_dpp v74, v74, v74 row_half_mirror {DP}")
        A("v_sub_f32 v73, v73, v74"); A("v_mul_f32 v73, 0x3fb8aa3b, v73"); A("v_exp_f32 v73, v73")
        A("v_mul_f32 v72, v73, v72")
        A("ds_bpermute_b32 v43, v57, v73")
        red8("v_add_f32", [72])
        A("v_rcp_f32 v72, v72")
        A("s_cmp_eq_u64 s[46:47], 0")
        A("v_mul_f32 v72, v44, v72")
        A("v_readfirstlane_b32 s60, v72")
        A("s_cbranch_scc1 L_p1_go")
        A("s_mov_b64 exec, s[46:47]")
    A("L_p1b:")
    A("buffer_load_dwordx4 v[68:71], v12, s[48:51], s53 offen sc1")
    A("s_sub_u32 s58, s58, 1"); A("s_cbranch_scc1 L_p1_to")
    A("s_waitcnt vmcnt(1)")
    perm2(68, 40); A("v_cmp_ne_u64 vcc, s[44:45], v[40:41]")
    A("L_nopad0:")
    A("s_and_b64 exec, exec, vcc"); A("s_cbranch_scc1 L_p1b")
    A("s_mov_b64 exec, -1")
    A("L_pad0:")
    A("L_p1_go:")
    stamp("ok")
    C("o = sum_p weight_p o_p, then 32 rows x 64 columns of wo on top of (1-g) * h W_down")
    for i in range(4): A(f"v_and_b32 v{88+i}, 0xffffff00, v{68+i}")
    A("s_waitcnt lgkmcnt(0)")
    A("v_pk_mul_f32 v[88:89], v[88:89], v[42:43] op_sel:[0,1] op_sel_hi:[1,1]")
    A("v_pk_mul_f32 v[90:91], v[90:91], v[42:43] op_sel:[0,1] op_sel_hi:[1,1]")
    swapred(88)
    A("v_mul_f32 v88, s60, v88")
    A("v_cvt_pk_bf16_f32 v88, v88, v88")
    A("v_mov_b32_dpp v88, v88 row_ror:4 row_mask:0xf bank_mask:0x6")
    for t in range(4):
        for d in range(4): A(f"v_and_b32_dpp v{48+4*t+d}, v88, v{4+d} quad_perm:[{t},{t},{t},{t}] {DP}")
        if t: A(f"v_mfma_f32_16x16x32_bf16 v[80:83], v[{44+4*t}:{47+4*t}], v[{20+4*t}:{23+4*t}], v[80:83]")
    A("v_mfma_f32_16x16x32_bf16 v[80:83], v[60:63], v[36:39], v[80:83]")
    A("s_mov_b32 exec_lo, 0x00ff00ff"); A("s_mov_b32 exec_hi, 0xff00ff00")
    A("s_cmp_ge_u32 s3, 2")
    A(f"ds_write_b128 v3, v[80:83] offset:{L_Y}")
    if o.clean & 2:
        A("s_mov_b64 exec, s[86:87]"); A("buffer_store_dword v64, v14, s[48:51], s54 offen sc1")
    A("s_mov_b64 exec, -1")
    A("s_waitcnt lgkmcnt(0)")
    A("s_barrier")
    stamp("b4")
    A("s_cbranch_scc1 L_f_cl" if o.clean else "s_cbranch_scc1 L_f_fin")
    C("final sum over heads: f64 atomics on {sum, count} pairs; the adder that sees count 31 owns the total and stores it")
    A(f"ds_read2st64_b32 v[16:17], v94 offset0:{L_Y//256} offset1:{L_Y//256+1}")
    A(f"ds_read2st64_b32 v[18:19], v94 offset0:{L_Y//256+2} offset1:{L_Y//256+3}")
    A("s_waitcnt lgkmcnt(0)")
    A("v_pk_add_f32 v[16:17], v[16:17], v[18:19]"); A("v_add_f32 v16, v16, v17")
    A(f"v_add_f32_dpp v16, v16, v16 quad_perm:[1,0,3,2] {DP}")
    A("v_cndmask_b32 v16, v16, 1.0, s[88:89]")
    if o.a32:
        A("v_mov_b32 v20, v16")
        A("buffer_atomic_add_f32 v20, v47, s[48:51], s96 offen sc0 sc1")
        A("s_waitcnt vmcnt(0)")
        A("v_add_f32 v16, v16, v20")
        A("v_cmp_eq_u32 vcc, 0x41f80000, v20")
        A("s_and_b64 vcc, vcc, s[88:89]")
    else:
        A("v_cvt_f64_f32 v[20:21], v16")
        A("buffer_atomic_add_f64 v[20:21], v47, s[48:51], s96 offen sc0 sc1")
        A("v_cvt_f64_f32 v[18:19], v16")
        A("s_waitcnt vmcnt(0)")
        A("v_add_f64 v[18:19], v[18:19], v[20:21]")
        A("v_cmp_eq_u64 vcc, s[90:91], v[20:21]")
        A("v_cvt_f32_f64 v16, v[18:19]")
        A("s_and_b64 vcc, vcc, s[88:89]")
    A("v_cvt_pk_bf16_f32 v16, v16, v16")
    A("L_nopad1:")
    A("s_lshr_b64 exec, vcc, 1")
    A("s_cbranch_execz L_f_fin")
    A(f"global_store_short v95, v16, s[24:25]{o.sto}")
    if o.clean:
        A("s_branch L_f_fin")
        A("L_f_cl:")
        A("s_lshl_b32 s60, s62, 13"); A("s_lshl1_add_u32 s61, s30, s3"); A("s_sub_u32 s61, s61, 2"); A("s_lshl_b32 s61, s61, 9"); A("s_add_u32 s60, s60, s61"); A(f"s_add_u32 s60, s60, {H0BASE}")
        A("s_mov_b32 exec_hi, 0")
        for r in range(16, 20): A(f"v_mov_b32 v{r}, s94")
        A("buffer_store_dwordx4 v[16:19], v12, s[48:51], s60 offen sc1")
    A("L_f_fin:")
    stamp("end")
    dump()
    A("s_endpgm")

    C("---- KV waves, rest: stream K then V with a few loads in flight, scores, per-wave softmax, P V")
    A("L_kv:"); inkv[0] = True
    masks()
    A("v_and_b32 v2, 15, v0"); A("v_lshlrev_b32 v3, 4, v2")
    A("v_lshrrev_b32 v9, 4, v0")
    A(f"s_mul_i32 s57, s3, {PSTR}")
    A("v_lshl_add_u32 v11, v2, 1, v9"); A("v_lshl_add_u32 v11, v11, 4, s57")
    A("s_lshl_b32 s57, s3, 3"); A("v_mov_b32 v2, s57")
    for n in range(o.n1, o.nq): kvload(n)
    cnt_wait("wq", "v8", "v10", 0, 0 if o.noq else 2, lambda: A("ds_read_b128 v[12:15], v3"))
    A("s_setprio 1")
    A(f"s_waitcnt vmcnt({o.nq - 8})")
    for d in range(4):
        for i in range(8):
            A(f"v_dot2_f32_bf16 v{16+i}, v{32+4*i+d}, v{12+d}, " + ("0" if d == 0 else f"v{16+i}"))
    for n in range(o.nq, o.nq + o.mid): kvload(n)
    C("transposing reduction over the 16 lanes of a key: load i ends in register i%2, lanes 4*(i/2).. of each row")
    for k in range(4): A(f"v_add_f32_dpp v{16+k}, v{16+k}, v{16+k} row_ror:8 row_mask:0xf bank_mask:0x3")
    for k in range(4): A(f"v_add_f32_dpp v{16+k}, v{20+k}, v{20+k} row_ror:8 row_mask:0xf bank_mask:0xc")
    for k in range(2): A(f"v_add_f32_dpp v{16+k}, v{16+k}, v{16+k} row_half_mirror row_mask:0xf bank_mask:0x5")
    for k in range(2): A(f"v_add_f32_dpp v{16+k}, v{18+k}, v{18+k} row_half_mirror row_mask:0xf bank_mask:0xa")
    for pat in ("quad_perm:[1,0,3,2]", "quad_perm:[2,3,0,1]"):
        for k in range(2): A(f"v_add_f32_dpp v{16+k}, v{16+k}, v{16+k} {pat} {DP}")
    C("scores rounded to bf16 before and after the 128^-0.5 scale, as the reference does; then max, exp, sum")
    A("v_cvt_pk_bf16_f32 v17, v16, v17")
    A("v_lshlrev_b32 v16, 16, v17"); A("v_and_b32 v17, 0xffff0000, v17")
    A("v_mul_f32 v16, 0x3db504f3, v16"); A("v_mul_f32 v17, 0x3db504f3, v17")
    A("v_cvt_pk_bf16_f32 v17, v16, v17")
    A("v_lshlrev_b32 v16, 16, v17"); A("v_and_b32 v17, 0xffff0000, v17")
    A("v_max_f32 v25, v16, v17")
    A(f"v_max_f32_dpp v25, v25, v25 row_ror:4 {DP}"); A(f"v_max_f32_dpp v25, v25, v25 row_ror:8 {DP}")
    A("v_max_f32_dpp v25, v25, v25 row_bcast:15 row_mask:0xa bank_mask:0xf")
    A("v_max_f32_dpp v25, v25, v25 row_bcast:31 row_mask:0xc bank_mask:0xf")
    A("v_readlane_b32 s57, v25, 63")
    for k in range(2): A(f"v_subrev_f32 v{16+k}, s57, v{16+k}")
    for k in range(2): A(f"v_mul_f32 v{16+k}, 0x3fb8aa3b, v{16+k}")
    for k in range(2): A(f"v_exp_f32 v{16+k}, v{16+k}")
    A(f"v_mov_b32 v10, {C_M}")
    A("v_add_f32 v24, v16, v17")
    for k in range(2): A(f"v_cvt_pk_bf16_f32 v{16+k}, v{16+k}, v{16+k}")
    extra = [f"v_add_f32_dpp v24, v24, v24 row_ror:4 {DP}", f"v_add_f32_dpp v24, v24, v24 row_ror:8 {DP}",
             "v_add_f32_dpp v24, v24, v24 row_bcast:15 row_mask:0xa bank_mask:0xf", "v_add_f32_dpp v24, v24, v24 row_bcast:31 row_mask:0xc bank_mask:0xf"]
    for i in range(8):
        for d in range(4):
            if i < 2 and d % 2 == 0: A(extra[2*i + d//2])
            A(f"v_and_b32_dpp v{32+4*i+d}, v{16+i%2}, v{4+d} row_newbcast:{4*(i//2)} {DP}")
        if i == 1:
            A("s_bfm_b64 exec, 1, 63")
            A(f"ds_write_b64 v2, v[24:25] offset:{L_LM}")
            A(f"ds_add_u32 v8, v10 offset:{L_CNT}")
            A("s_mov_b64 exec, -1")
            for n in range(o.nq + o.mid, 16): kvload(n)
            cnt_add("v8", "v26", C_X)
    for i in range(8):
        A(f"s_waitcnt vmcnt({7-i})")
        A(f"v_mfma_f32_16x16x32_bf16 v[28:31], v[{32+4*i}:{35+4*i}], v[{64+4*i}:{67+4*i}], " + ("0" if i == 0 else "v[28:31]"))
    A("s_mov_b32 exec_hi, 0")
    A(f"ds_write_b128 v11, v[28:31] offset:{L_PART}")
    A("s_waitcnt lgkmcnt(0)")
    A("s_barrier")
    A("L_end:")
    A("s_endpgm")
    C("statistics not complete yet: sample them again (F waves)")
    A("L_p1:")
    A("s_sub_u32 s58, s58, 1"); A("s_cbranch_scc1 L_p1_to")
    A("L_p1_ld:")
    A("s_mov_b64 exec, 0xff")
    A("buffer_load_dwordx4 v[72:75], v13, s[48:51], s52 offen sc1")
    A("s_mov_b64 exec, -1")
    if o.lmf: A("s_waitcnt vmcnt(0)")
    A("s_branch L_p1_c")
    A("L_cold:")
    C("---- cold paths")
    A("L_acc_re:")
    A("s_sub_u32 s93, s93, 1"); A("s_cbranch_scc1 L_end")
    A("global_load_dword v95, v94, s[26:27] sc1")
    A("s_waitcnt vmcnt(0)"); A("s_branch L_f_achk")
    C("no L2-local copy arrived (group spread over XCDs): publish write-through copies once, then poll both copies in turn")
    def pubG(r, va, so):
        A("s_lshr_b32 s60, s94, 24"); A(f"v_bfi_b32 v{r+3}, v8, s60, v{r+3}"); A(f"s_add_u32 s60, {so}, {GOFF}")
        A(f"buffer_store_dwordx4 v[{r}:{r+3}], {va}, s[48:51], s60 offen sc1")
    def timeout(name, pubs, addrs, tail):
        A(f"L_{name}_to:")
        A("s_sub_u32 s93, s93, 1"); A("s_cbranch_scc1 L_end")
        A("s_cmp_lg_u32 s59, 0"); A(f"s_cbranch_scc1 L_{name}_t2")
        A("s_mov_b32 s59, 1")
        pubs()
        A(f"L_{name}_t2:")
        A("s_mov_b64 exec, -1")
        for a in addrs: A(f"s_xor_b32 {a}, {a}, {GOFF}")
        A("s_xor_b32 s92, s92, s99"); A("s_mov_b32 s58, 0")
        tail()
        A(f"s_branch L_{name}_ld")
    def p0pub():
        A("s_mov_b32 exec_lo, s98"); A("s_mov_b32 exec_hi, 0"); pubG(80, "v1", "s57")
    def p1pub():
        A("s_mov_b64 exec, s[86:87]")
        A("v_lshrrev_b32 v58, v59, s94"); A("v_bfi_b32 v64, v8, v58, v64"); A(f"s_add_u32 s60, s54, {GOFF}")
        A("buffer_store_dword v64, v14, s[48:51], s60 offen sc1")
        A("s_mov_b64 exec, 1"); pubG(76, "v92", "s97")
    def p1tail():
        expect(); A("buffer_load_dwordx4 v[68:71], v12, s[48:51], s53 offen sc1")
    timeout("p0", p0pub, ["s56"], lambda: None)
    timeout("p1", p1pub, ["s52", "s53"], p1tail)

    txt = HEADER + DOC + f"; @launch grid=(256,1,1) block=(768,1,1) lds={LDS_BYTES}\n"
    txt += '.amdgcn_target "amdgcn-amd-amdhsa--gfx950"\n.text\n.p2align 12\n'
    if o.pre: txt += f".fill {64*o.pre}, 4, 0xbf810000    ; unreachable: places the entry inside its 4 KiB page\n"
    txt += f".globl {KN}\n.p2align 8\n.type {KN},@function\n{KN}:\n@@BODY@@"
    txt += f""".section .rodata,"a"
.p2align 6
.amdhsa_kernel {KN}
  .amdhsa_next_free_vgpr 96
  .amdhsa_next_free_sgpr 100
  .amdhsa_accum_offset 96
  .amdhsa_group_segment_fixed_size 0
  .amdhsa_kernarg_size 104
  .amdhsa_user_sgpr_count 2
  .amdhsa_user_sgpr_kernarg_segment_ptr 1
  .amdhsa_system_sgpr_workgroup_id_x 1
  .amdhsa_float_denorm_mode_32 3
.end_amdhsa_kernel
"""
    return txt, finalize(L).rstrip("\n").split("\n")

def place_pads(o, txt, body):
    import build
    isins = lambda l: l.startswith("    ")
    lab = []
    for i, l in enumerate(body):
        if isins(l): lab.append(f"I{i}:")
        lab.append(l)
    lab += [f".set PAD{w}, L_back" for w in range(NPAD)]
    open(o.out, "w").write(txt.replace("@@BODY@@", "\n".join(lab) + "\n")); build.build(o.out)
    d = syms(o.out[:-2] + ".co")
    idx = [i for i, l in enumerate(body) if isins(l)]
    size = {i: (d[f"I{j}"] - d[f"I{i}"]) for i, j in zip(idx, idx[1:])}; size[idx[-1]] = 4
    nxt = lambda a: min((a & ~63) + 17*64, (a | 4095) + 1)
    out, addr, n = [], d[KN], 0
    bound = nxt(addr); info = []
    i = 0; nopad = False
    stop = lambda l: l in ("L_kv:", "L_cold:") or l.startswith("L_nopad")
    while i < len(body):
        l = body[i]
        if l == "L_cold:":
            out += body[i+1:]; break
        if l.startswith("L_nopad"): nopad = True; i += 1; continue
        if l.startswith("L_pad"): nopad = False; i += 1; continue
        if l == "L_kv:":
            nopad = False
            if addr >= bound + 64: info.append("UNCOVERED F TAIL")
            if addr < bound: out.append(f".fill {(bound-addr)//4}, 4, 0xbf810000    ; unreachable: aligns L_kv to an instruction-fetch window"); addr = bound
            info.append(("kv", hex(addr))); bound = nxt(addr)
        elif isins(l) and addr >= bound and not nopad:
            j, a = i, addr; pick = None
            while j < len(body) and a < (bound & ~63) + 64 and not stop(body[j]):
                if isins(body[j]):
                    if body[j].split()[0] == "s_nop": pick = j; break
                    a += size[j]
                j += 1
            if pick is not None:
                while i < pick:
                    out.append(body[i]); addr += size.get(i, 0); i += 1
                k = int(body[i].split()[1])
                out += [f"PAD{n}:", "    s_cbranch_execz L_back"]; info.append((n, hex(addr))); bound = nxt(addr); addr += 4; n += 1
                if k: out.append(f"    s_nop {k-1}"); addr += 4
                i += 1; continue
            out += [f"PAD{n}:", "    s_cbranch_execz L_back"]; info.append((n, hex(addr))); bound = nxt(addr); addr += 4; n += 1
        out.append(l); addr += size.get(i, 0); i += 1
    assert n <= NPAD, n
    out = [re.sub(r"PAD(\d+)$", lambda m: m.group(0) if int(m.group(1)) < n else "L_back", x) for x in out]
    print("entry %x pads %s end %x" % (d[KN], info, addr), file=sys.stderr)
    return out

def parse(argv):
    p = argparse.ArgumentParser()
    p.add_argument("out")
    p.add_argument("--ld", default="nt"); p.add_argument("--ldf", default="none")
    p.add_argument("--pol", default="dddnnnnnnnnnnnnn"); p.add_argument("--depths", default="3333333333333344")
    p.add_argument("--n0", type=int, default=1); p.add_argument("--n1", type=int, default=3); p.add_argument("--nq", type=int, default=14)
    p.add_argument("--stamps", type=int, default=0); p.add_argument("--probe", default=""); p.add_argument("--scramble", type=int, default=0)
    p.add_argument("--nl", type=int, default=300); p.add_argument("--spin", type=int, default=400000); p.add_argument("--pre", type=int, default=1)
    p.add_argument("--first", type=int, default=1); p.add_argument("--lmf", type=int, default=1); p.add_argument("--l0", type=int, default=1); p.add_argument("--noq", type=int, default=0); p.add_argument("--sxor", type=int, default=3); p.add_argument("--tlb", type=int, default=0); p.add_argument("--preout", type=int, default=0); p.add_argument("--pat", default=""); p.add_argument("--mid", type=int, default=0); p.add_argument("--gs", default=""); p.add_argument("--pro", type=int, default=0); p.add_argument("--a32", type=int, default=0); p.add_argument("--ep", type=int, default=0); p.add_argument("--clean", type=int, default=0); p.add_argument("--sto", default="none"); p.add_argument("--pt1", type=int, default=1); p.add_argument("--pre3", type=int, default=1); p.add_argument("--prea", type=int, default=0); p.add_argument("--wdearly", type=int, default=0); p.add_argument("--ilv", type=int, default=0)
    o = p.parse_args(argv)
    for k in ("ld", "ldf", "sto"): setattr(o, k, "" if getattr(o, k) == "none" else " " + getattr(o, k).replace("+", " "))
    return o
if __name__ == "__main__":
    import build
    o = parse(sys.argv[1:])
    txt, body = gen(o)
    body = place_pads(o, txt, body)
    open(o.out, "w").write(txt.replace("@@BODY@@", "\n".join(body) + "\n"))
    print(build.build(o.out))
```
